```python
import torch

def _softmax(x, axis=-1):
    return torch.softmax(x, dim=axis)
def _gelu(x):
    return torch.nn.functional.gelu(x, approximate="tanh")
def _silu(x):
    return torch.nn.functional.silu(x)
def _sigmoid(x):
    return torch.sigmoid(x)
def _layernorm(x, axis=-1, eps=1e-5):
    m = x.mean(dim=axis, keepdim=True)
    v = x.var(dim=axis, keepdim=True, unbiased=False)
    return (x - m) / torch.sqrt(v + eps)
def _scatter_add(tgt, idx, src, axis=0):
    return tgt.clone().index_add_(axis, idx, src)
def _segment_sum(src, seg, n):
    out = torch.zeros((n,) + src.shape[1:], dtype=src.dtype)
    return out.index_add_(0, seg, src)
def _pad(x, pw):
    flat = tuple(v for pair in reversed(pw) for v in pair)
    return torch.nn.functional.pad(x, flat)

kernel_name = 'gated_mix__mha_block__ssm_conv_s5__prompt'

def setup_inputs():

    _w = (lambda a: (lambda t: t.to(torch.bfloat16) if t.is_floating_point() else t)(torch.as_tensor(a)))
    def _A_setup():
        B, S, D, H = 1, 2048, 512, 32
        return {
            "x": _w((lambda *s: torch.randn(*s, dtype=torch.bfloat16) * 0.05)(B, S, D)),
            "wqkv": _w((lambda *s: torch.randn(*s, dtype=torch.bfloat16) * 0.8)(D, 3 * D)),
            "wo": _w((lambda *s: torch.randn(*s, dtype=torch.bfloat16) * 0.05)(D, D)),
        }
    _A_in = _A_setup()

    def _B_setup():
        B, S, D = 1, 2048, 512
        P = D
        Lambda_re = -0.5 * (lambda _x: torch.exp(torch.as_tensor(_x)))((lambda *s: torch.randn(*s, dtype=torch.bfloat16) * 0.4)(P))
        Lambda_im = (lambda *s: torch.randn(*s, dtype=torch.bfloat16) * 0.8)(P) * 1.0
        B_re = (lambda *s: torch.randn(*s, dtype=torch.bfloat16) * 0.8)(P, D) * (D ** -0.5)
        B_im = (lambda *s: torch.randn(*s, dtype=torch.bfloat16) * 0.8)(P, D) * (D ** -0.5)
        C_re = (lambda *s: torch.randn(*s, dtype=torch.bfloat16) * 0.8)(D, P) * (P ** -0.5)
        C_im = (lambda *s: torch.randn(*s, dtype=torch.bfloat16) * 0.8)(D, P) * (P ** -0.5)
        log_dt = (lambda *s: torch.randn(*s, dtype=torch.bfloat16) * 0.4)(P) * 0.3 - 2.0
        Dskip = (lambda *s: torch.randn(*s, dtype=torch.bfloat16) * 0.1)(D)
        return {
            "x": _w((lambda *s: torch.randn(*s, dtype=torch.bfloat16) * 0.05)(B, S, D)),
            "Lambda_re": _w(Lambda_re),
            "Lambda_im": _w(Lambda_im),
            "B_re": _w(B_re),
            "B_im": _w(B_im),
            "C_re": _w(C_re),
            "C_im": _w(C_im),
            "log_dt": _w(log_dt),
            "Dskip": _w(Dskip),
        }
    _B_in = _B_setup()

    return {
        "A_x": _A_in["x"],
        "A_wqkv": _A_in["wqkv"],
        "A_wo": _A_in["wo"],
        "B_x": _B_in["x"],
        "B_Lambda_re": _B_in["Lambda_re"],
        "B_Lambda_im": _B_in["Lambda_im"],
        "B_B_re": _B_in["B_re"],
        "B_B_im": _B_in["B_im"],
        "B_C_re": _B_in["C_re"],
        "B_C_im": _B_in["C_im"],
        "B_log_dt": _B_in["log_dt"],
        "B_Dskip": _B_in["Dskip"],
        "gate_w": _w((lambda *s: torch.randn(*s, dtype=torch.bfloat16) * 0.05)(512) * 16.0),
    }

def reference(A_x, A_wqkv, A_wo, B_x, B_Lambda_re, B_Lambda_im, B_B_re, B_B_im, B_C_re, B_C_im, B_log_dt, B_Dskip, gate_w):
    def _A_ref(x, wqkv, wo):
        B, S, D = x.shape
        H = 32
        Dh = D // H
        qkv = (lambda x, *d: x.permute(*d))((x @ wqkv).reshape(B, S, 3, H, Dh), 2, 0, 3, 1, 4)
        q, k, v = qkv[0], qkv[1], qkv[2]
        scores = torch.einsum("bhqd,bhkd->bhqk", q, k) * (Dh ** -0.5)
        p = _softmax(scores, axis=-1)
        o = torch.einsum("bhqk,bhkd->bhqd", p, v)
        return (lambda x, *d: x.permute(*d))(o, 0, 2, 1, 3).reshape(B, S, D) @ wo

    def _B_ref(x, Lambda_re, Lambda_im, B_re, B_im, C_re, C_im, log_dt, Dskip):
        Bsz, L, H = x.shape
        Lam = Lambda_re + 1j * Lambda_im
        Bmat = B_re + 1j * B_im
        Cmat = C_re + 1j * C_im
        dt = torch.exp(log_dt)
        Lam_bar = torch.exp(dt * Lam)
        B_bar = ((Lam_bar - 1.0) / Lam)[:, None] * Bmat
        Bu = torch.einsum("bld,pd->blp", x + 0j, B_bar)
        h = torch.zeros_like(Bu[:, 0, :])
        hs = []
        for t in range(L):
            h = Lam_bar[None, :] * h + Bu[:, t, :]
            hs.append(h)
        hseq = torch.stack(hs, 1)
        y = 2.0 * torch.einsum("blp,dp->bld", hseq, Cmat).real + x * Dskip[None, None, :]
        return y

    x = A_x
    g = _sigmoid((x * gate_w).sum(-1, keepdims=True))
    a = _A_ref(x, A_wqkv, A_wo)
    b = _B_ref(x, B_Lambda_re, B_Lambda_im, B_B_re, B_B_im, B_C_re, B_C_im, B_log_dt, B_Dskip)
    return g * a + (1 - g) * b
```

```python
class Asm:
    def __init__(self):
        self.lines = []
    def __call__(self, s):
        for l in s.strip("\n").split("\n"):
            self.lines.append("  " + l.strip())
    def label(self, l):
        self.lines.append(l + ":")
    def raw(self, s):
        self.lines.append(s)
    def text(self):
        return "\n".join(self.lines) + "\n"

def vr(b, n=1):
    return f"v{b}" if n == 1 else f"v[{b}:{b+n-1}]"
def sr(b, n=1):
    return f"s{b}" if n == 1 else f"s[{b}:{b+n-1}]"

def kernel_block(name, body, vgpr, sgpr=102, accum=None):
    if accum is None:
        accum = (vgpr + 3) // 4 * 4
    return f""".text
.globl {name}
.p2align 8
.type {name},@function
{name}:
{body}
  s_endpgm
.section .rodata,"a"
.p2align 6
.amdhsa_kernel {name}
  .amdhsa_next_free_vgpr {vgpr}
  .amdhsa_next_free_sgpr {sgpr}
  .amdhsa_accum_offset {accum}
  .amdhsa_group_segment_fixed_size 0
  .amdhsa_kernarg_size 128
  .amdhsa_user_sgpr_count 2
  .amdhsa_user_sgpr_kernarg_segment_ptr 1
  .amdhsa_system_sgpr_workgroup_id_x 1
  .amdhsa_float_denorm_mode_32 3
.end_amdhsa_kernel
"""

KA = dict(x=0, wqkv=8, wo=16, bx=24, lre=32, lim=40, bre=48, bim=56, cre=64, cim=72, logdt=80, dskip=88, gate=96, out=104, dbg=112, ws=120)

def load_ptr(a, sreg, name):
    a(f"s_load_dwordx2 {sr(sreg,2)}, s[0:1], {KA[name]}")

def make_srd(a, s, nbytes):
    a(f"s_mov_b32 s{s+2}, {hex(nbytes)}")
    a(f"s_mov_b32 s{s+3}, 0x00020000")
```

```python
from k_common import *
from prof import *

LX, LW, LB, LG = 0, 65536, 114688, 147456
C1_LDS = 148480
QSCALE = 0x3eb8aa3b
S_WS, S_X, S_W, S_BRE, S_BIM, S_GT = 4, 8, 12, 16, 20, 24
S_HP, S_RB, S_WV, S_T = 28, 29, 30, 31
S_SOX, S_SOW, S_SOB, S_MX, S_MW, S_MB = 32, 33, 34, 35, 38, 39
S_TMP = 36
V_L16 = 1
V_DO = 2
V_AX = 8
V_A1 = 12
V_D0, V_D1, V_D2 = 16, 32, 48
V_F = 64
V_T = 112

def decode_c(a, s_hp, s_rb, tmp):
    a(f"s_and_b32 s{s_hp}, s2, 7")
    a(f"s_lshl_b32 s{s_hp}, s{s_hp}, 1")
    a(f"s_bfe_u32 s{tmp}, s2, 0x10003")
    a(f"s_add_u32 s{s_hp}, s{s_hp}, s{tmp}")
    a(f"s_lshr_b32 s{s_rb}, s2, 4")

def c1_issue(a, kc):
    slot = kc % 4
    for i in range(4):
        a(f"s_add_u32 m0, s{S_MX}, {slot*16384 + i*1024}")
        a(f"s_add_u32 s{S_TMP}, s{S_SOX}, {i*4096 + kc*128}")
        a(f"buffer_load_dwordx4 v{V_DO + (i&1)}, {sr(S_X,4)}, s{S_TMP} offen lds")
    a(f"s_add_u32 s{S_TMP}, s{S_SOW}, {kc*64*3072}")
    for i in range(3):
        a(f"s_add_u32 m0, s{S_MW}, {slot*12288 + i*1024}")
        a("s_nop 0")
        a(f"buffer_load_dwordx4 v{V_DO + 2 + i}, {sr(S_W,4)}, s{S_TMP} offen lds")
    a(f"s_add_u32 s{S_TMP}, s{S_SOB}, {kc*128}")
    for i in range(2):
        a(f"s_add_u32 m0, s{S_MB}, {slot*8192 + i*4096}")
        a("s_nop 0")
        a(f"buffer_load_dwordx4 v{V_DO + 5}, {sr(S_BRE if i == 0 else S_BIM,4)}, s{S_TMP} offen lds")

def c1_reads(a, role, g):
    kc, s, buf = g >> 2, g & 3, g % 3
    slot = kc % 4
    F = V_F + 16 * buf
    a(f"ds_read_b128 {vr(F,4)}, v{V_AX+s} offset:{slot*16384}")
    if role == "A":
        for seg in range(3):
            for e in range(2):
                a(f"ds_read_b64_tr_b16 {vr(F+4+4*seg+2*e,2)}, v{V_A1} offset:{slot*12288 + (16*s+4*e)*192 + seg*64}")
        return 7
    else:
        a(f"ds_read_b128 {vr(F+4,4)}, v{V_A1+s} offset:{slot*8192}")
        a(f"ds_read_b128 {vr(F+8,4)}, v{V_A1+s} offset:{slot*8192 + 4096}")
        return 3

def c1_compute(a, role, g):
    F = V_F + 16 * (g % 3)
    if role == "A":
        mfma32(a, V_D0, F + 4, F, V_D0)
        mfma32(a, V_D1, F + 8, F, V_D1)
        mfma32(a, V_D2, F, F + 12, V_D2)
    else:
        mfma32(a, V_D0, F, F + 4, V_D0)
        mfma32(a, V_D1, F, F + 8, V_D1)

def c1_main(a, role, prof=False):
    a("s_barrier")
    if prof: stamp(a, 2)
    nr = c1_reads(a, role, 0)
    c1_reads(a, role, 1)
    for g in range(32):
        kc, s = g >> 2, g & 3
        if g + 2 < 32:
            c1_reads(a, role, g + 2)
            a(f"s_waitcnt lgkmcnt({2*nr})")
        elif g + 1 < 32:
            a(f"s_waitcnt lgkmcnt({nr})")
        else:
            a("s_waitcnt lgkmcnt(0)")
        c1_compute(a, role, g)
        if s == 1 and kc <= 6:
            a("s_barrier")
            if prof and kc == 3: stamp(a, 3)
    a("s_nop 15")

def c1_setup_common(a):
    load_ptr(a, S_WS, "ws"); load_ptr(a, S_X, "x"); load_ptr(a, S_W, "wqkv")
    load_ptr(a, S_BRE, "bre"); load_ptr(a, S_BIM, "bim"); load_ptr(a, S_GT, "gate")
    a("v_lshrrev_b32 v2, 6, v0")
    a("v_and_b32 v0, 63, v0")
    a(f"v_readfirstlane_b32 s{S_WV}, v2")
    decode_c(a, S_HP, S_RB, S_TMP)
    a(f"v_lshlrev_b32 v{V_L16}, 4, v0")
    a(f"s_and_b32 s{S_T}, s{S_WV}, 3")

def c1_srds(a):
    a("s_waitcnt lgkmcnt(0)")
    make_srd(a, S_WS, WS_USED); make_srd(a, S_X, 2 << 20); make_srd(a, S_W, 512*3072)
    make_srd(a, S_BRE, 512*1024); make_srd(a, S_BIM, 512*1024); make_srd(a, S_GT, 1024)

def c1_frag_addr(a):
    T = V_T
    a(f"v_and_b32 v{T}, 31, v0")
    a(f"v_lshrrev_b32 v{T+1}, 5, v0")
    a(f"v_bfe_u32 v{T+2}, v0, 1, 3")
    a(f"v_lshlrev_b32 v{T+3}, 7, v{T}")
    a(f"s_lshl_b32 s{S_TMP}, s{S_T}, 12")
    for s in range(4):
        a(f"v_add_u32 v{T+4}, {2*s}, v{T+1}")
        a(f"v_xor_b32 v{T+4}, v{T+4}, v{T+2}")
        a(f"v_lshl_add_u32 v{T+8+s}, v{T+4}, 4, v{T+3}")
        a(f"v_add_u32 v{V_AX+s}, s{S_TMP}, v{T+8+s}")

def c1_tr_addr(a, dst):
    T = V_T
    a(f"v_lshrrev_b32 v{T+1}, 5, v0")
    a(f"v_bfe_u32 v{T}, v0, 2, 2")
    a(f"v_lshl_add_u32 v{T}, v{T+1}, 3, v{T}")
    a(f"v_mul_u32_u24 v{T}, 192, v{T}")
    a(f"v_bfe_u32 v{T+2}, v0, 4, 1")
    a(f"v_lshlrev_b32 v{T+2}, 5, v{T+2}")
    a(f"v_and_b32 v{T+3}, 3, v0")
    a(f"v_lshlrev_b32 v{T+3}, 3, v{T+3}")
    a(f"v_add3_u32 v{dst}, v{T}, v{T+2}, v{T+3}")
    a(f"v_add_u32 v{dst}, {LW}, v{dst}")

def c1_roleA(a, prof):
    c1_frag_addr(a)
    c1_tr_addr(a, V_A1)
    for i in range(48):
        a(f"v_mov_b32 v{V_D0+i}, 0")
    if prof: stamp(a, 1)
    c1_main(a, "A", prof)

def c1_roleB(a, prof):
    T = V_T
    c1_frag_addr(a)
    for s in range(4):
        a(f"v_add_u32 v{V_A1+s}, {LB}, v{T+8+s}")
    for i in range(32):
        a(f"v_mov_b32 v{V_D0+i}, 0")
    if prof: stamp(a, 1)
    c1_main(a, "B", prof)

def c1_loader_setup(a):
    T = V_T
    a(f"v_lshrrev_b32 v{T}, 4, v0")
    a(f"v_and_b32 v{T+1}, 7, v0")
    a(f"v_xor_b32 v{T}, v{T}, v{T+1}")
    a(f"v_lshlrev_b32 v{T}, 4, v{T}")
    a(f"v_lshrrev_b32 v{T+1}, 5, v0")
    a(f"v_lshlrev_b32 v{T+1}, 4, v{T+1}")
    a(f"v_bfe_u32 v{T+2}, v0, 3, 2")
    a(f"v_add_u32 v{T+1}, v{T+1}, v{T+2}")
    a(f"v_lshl_add_u32 v{V_DO}, v{T+1}, 10, v{T}")
    a(f"v_xor_b32 v{V_DO+1}, 64, v{V_DO}")
    a(f"s_lshl_b32 s{S_SOX}, s{S_RB}, 2")
    a(f"s_add_u32 s{S_SOX}, s{S_SOX}, s{S_T}")
    a(f"s_lshl_b32 s{S_SOX}, s{S_SOX}, 15")
    a(f"s_lshl_b32 s{S_MX}, s{S_T}, 12")
    a(f"v_lshrrev_b32 v{T+1}, 3, v0")
    a(f"v_lshl_add_u32 v{V_DO+5}, v{T+1}, 10, v{T}")
    a(f"s_and_b32 s{S_TMP}, s{S_T}, 1")
    a(f"s_lshl_b32 s{S_TMP}, s{S_TMP}, 6")
    a(f"v_xor_b32 v{V_DO+5}, s{S_TMP}, v{V_DO+5}")
    a(f"s_lshl_b32 s{S_SOB}, s{S_HP}, 2")
    a(f"s_add_u32 s{S_SOB}, s{S_SOB}, s{S_T}")
    a(f"s_lshl_b32 s{S_SOB}, s{S_SOB}, 13")
    a(f"s_lshl_b32 s{S_MB}, s{S_T}, 10")
    a(f"s_add_u32 s{S_MB}, s{S_MB}, {LB}")
    for e in range(3):
        a(f"v_add_u32 v{T+1}, {1024*e}, v{V_L16}")
        a(f"v_mul_u32_u24 v{T+2}, 21846, v{T+1}")
        a(f"v_lshrrev_b32 v{T+2}, 22, v{T+2}")
        a(f"v_mul_u32_u24 v{T+3}, 192, v{T+2}")
        a(f"v_sub_u32 v{T+3}, v{T+1}, v{T+3}")
        a(f"v_lshrrev_b32 v{T+4}, 6, v{T+3}")
        a(f"v_and_b32 v{T+3}, 63, v{T+3}")
        a(f"v_mul_u32_u24 v{T+2}, 3072, v{T+2}")
        a(f"v_lshl_add_u32 v{T+2}, v{T+4}, 10, v{T+2}")
        a(f"v_add_u32 v{V_DO+2+e}, v{T+2}, v{T+3}")
    a(f"s_mul_i32 s{S_SOW}, s{S_T}, {16*3072}")
    a(f"s_lshl_b32 s{S_TMP}, s{S_HP}, 6")
    a(f"s_add_u32 s{S_SOW}, s{S_SOW}, s{S_TMP}")
    a(f"s_mul_i32 s{S_MW}, s{S_T}, 3072")
    a(f"s_add_u32 s{S_MW}, s{S_MW}, {LW}")

def c1_loader(a, prof):
    c1_loader_setup(a)
    c1_srds(a)
    c1_issue(a, 0); c1_issue(a, 1)
    if prof: stamp(a, 1)
    a("s_waitcnt vmcnt(9)")
    a("s_barrier")
    if prof: stamp(a, 2)
    c1_issue(a, 2); c1_issue(a, 3)
    a("s_waitcnt vmcnt(18)")
    a("s_barrier")
    for kc in range(1, 7):
        a(f"s_waitcnt vmcnt({9 if kc <= 5 else 0})")
        a("s_barrier")
        if prof and kc == 3: stamp(a, 3)
        if kc <= 4:
            c1_issue(a, kc + 3)

def gate_rows(a):
    T = V_T
    a(f"s_lshl_b32 s{S_TMP}, s{S_RB}, 4")
    a(f"s_add_u32 s{S_TMP}, s{S_TMP}, s{S_HP}")
    a(f"s_lshl_b32 s{S_TMP}, s{S_TMP}, 2")
    a(f"s_add_u32 s{S_TMP}, s{S_TMP}, s{S_T}")
    a(f"s_lshl_b32 s{S_TMP+1}, s{S_TMP}, 1")
    a(f"s_lshl_b32 s{S_TMP}, s{S_TMP+1}, 10")
    a(f"buffer_load_dwordx4 {vr(V_D0,4)}, v{V_L16}, {sr(S_GT,4)}, 0 offen")
    a(f"buffer_load_dwordx4 {vr(V_D0+4,4)}, v{V_L16}, {sr(S_X,4)}, s{S_TMP} offen")
    a(f"buffer_load_dwordx4 {vr(V_D0+8,4)}, v{V_L16}, {sr(S_X,4)}, s{S_TMP} offen offset:1024")
    a(f"v_mov_b32 v{T}, 0"); a(f"v_mov_b32 v{T+1}, 0")
    a("s_waitcnt vmcnt(0)")
    for r in range(2):
        for i in range(4):
            a(f"v_dot2c_f32_bf16 v{T+r}, v{V_D0+4+4*r+i}, v{V_D0+i}")
    for sh in ("row_shr:1", "row_shr:2", "row_shr:4", "row_shr:8"):
        a("s_nop 1")
        for r in range(2):
            a(f"v_add_f32_dpp v{T+r}, v{T+r}, v{T+r} {sh} row_mask:0xf bank_mask:0xf bound_ctrl:1")
    a("s_nop 1")
    for r in range(2):
        a(f"v_add_f32_dpp v{T+r}, v{T+r}, v{T+r} row_bcast:15 row_mask:0xa bank_mask:0xf")
    a("s_nop 1")
    for r in range(2):
        a(f"v_add_f32_dpp v{T+r}, v{T+r}, v{T+r} row_bcast:31 row_mask:0xc bank_mask:0xf")
    for r in range(2):
        a(f"v_mul_f32 v{T+r}, 0xbfb8aa3b, v{T+r}")
    for r in range(2):
        a(f"v_exp_f32 v{T+r}, v{T+r}")
    a("s_nop 0")
    for r in range(2):
        a(f"v_add_f32 v{T+r}, 1.0, v{T+r}")
    for r in range(2):
        a(f"v_rcp_f32 v{T+r}, v{T+r}")
    a(f"s_lshl_b32 s{S_TMP}, s{S_TMP+1}, 2")
    a(f"s_add_u32 s{S_TMP}, s{S_TMP}, {GF}")
    a(f"v_mov_b32 v{T+2}, 0")
    a("s_mov_b32 exec_lo, 0"); a("s_mov_b32 exec_hi, 0x80000000")
    a(f"buffer_store_dwordx2 v[{T}:{T+1}], v{T+2}, {sr(S_WS,4)}, s{S_TMP} offen")
    a("s_mov_b64 exec, -1")

LU = 0
H_UR, H_UI = 24, 40
H_R = dict(lr=56, li=57, cr=58, ci=59, mu=60, t=76)
H_HR, H_HI, H_TR, H_TI = 84, 85, 86, 87
H_CH, H_SEG = 88, 89
H_MM = 90

def c1_u_to_lds(a):
    T = V_T
    a(f"v_and_b32 v{T}, 31, v0")
    a(f"v_lshrrev_b32 v{T+1}, 5, v0")
    a(f"s_lshl_b32 s{S_TMP}, s{S_T}, 1")
    a(f"v_add_u32 v{T+1}, s{S_TMP}, v{T+1}")
    a(f"v_lshl_add_u32 v{T+1}, v{T+1}, 6, v{T}")
    a(f"v_lshlrev_b32 v{T+1}, 6, v{T+1}")
    a(f"v_bfe_u32 v{T+2}, v0, 1, 2")
    for c in range(4):
        a(f"v_xor_b32 v{T+3}, {c}, v{T+2}")
        a(f"v_lshl_add_u32 v{T+3}, v{T+3}, 4, v{T+1}")
        a(f"ds_write_b128 v{T+3}, {vr(V_D0+4*c,4)} offset:{LU}")
        a(f"ds_write_b128 v{T+3}, {vr(V_D1+4*c,4)} offset:{LU + 32*64}")

def helper_u_from_lds(a, s_hw):
    T = H_R["t"]
    a(f"v_lshrrev_b32 v{T}, 3, v0")
    a(f"s_lshl_b32 s{S_TMP}, s{s_hw}, 3")
    a(f"v_add_u32 v{T}, s{S_TMP}, v{T}")
    a(f"v_and_b32 v{H_SEG}, 7, v0")
    a(f"v_lshl_add_u32 v{T+1}, v{H_SEG}, 6, v{T}")
    a(f"v_lshlrev_b32 v{T+1}, 6, v{T+1}")
    a(f"v_bfe_u32 v{T+2}, v{T}, 1, 2")
    for c in range(4):
        a(f"v_xor_b32 v{T+3}, {c}, v{T+2}")
        a(f"v_lshl_add_u32 v{T+3}, v{T+3}, 4, v{T+1}")
        a(f"ds_read_b128 {vr(H_UR+4*c,4)}, v{T+3} offset:{LU}")
        a(f"ds_read_b128 {vr(H_UI+4*c,4)}, v{T+3} offset:{LU + 32*64}")

def helper_params(a, s_hw, s_hp, srd0):
    a(f"v_lshrrev_b32 v{H_CH}, 3, v0")
    a(f"s_lshl_b32 s{S_TMP}, s{s_hp}, 5")
    a(f"s_lshl_b32 s{S_TMP+1}, s{s_hw}, 3")
    a(f"s_add_u32 s{S_TMP}, s{S_TMP}, s{S_TMP+1}")
    a(f"v_add_u32 v{H_CH}, s{S_TMP}, v{H_CH}")
    a(f"v_lshlrev_b32 v{H_R['t']+6}, 1, v{H_CH}")
    a(f"v_and_b32 v{H_SEG}, 7, v0")
    ssm_params(a, srd0, srd0 + 4, srd0 + 8, H_R["t"] + 6, H_R)

def load_ssm_srds(a, srd0):
    load_ptr(a, srd0, "lre"); load_ptr(a, srd0 + 4, "lim"); load_ptr(a, srd0 + 8, "logdt")
    a("s_waitcnt lgkmcnt(0)")
    for i in range(3):
        make_srd(a, srd0 + 4*i, 1024)

def ks8(a, xr, xi):
    for k, d in enumerate((1, 2, 4)):
        mu = H_R["mu"] + 2*k
        a(f"v_cmp_le_u32 vcc, {d}, v{H_SEG}")
        a(f"v_mov_b32 v{H_TR}, 0")
        a(f"v_mov_b32 v{H_TI}, 0")
        a(f"v_cndmask_b32 v{H_MM}, 0, v{mu}, vcc")
        a(f"v_cndmask_b32 v{H_MM+1}, 0, v{mu+1}, vcc")
        a(f"v_mov_b32_dpp v{H_TR}, v{xr} row_shr:{d} row_mask:0xf bank_mask:0xf")
        a(f"v_mov_b32_dpp v{H_TI}, v{xi} row_shr:{d} row_mask:0xf bank_mask:0xf")
        cmul_acc(a, xr, xi, H_MM, H_MM + 1, H_TR, H_TI)
        a("s_nop 1")

def prep_weights(a, s_wg):
    load_ptr(a, 60, "cre"); load_ptr(a, 64, "cim"); load_ptr(a, 68, "wo")
    a("s_waitcnt lgkmcnt(0)")
    make_srd(a, 60, 512*1024); make_srd(a, 64, 512*1024); make_srd(a, 68, 512*1024)
    a("v_and_b32 v24, 31, v0")
    a("v_lshlrev_b32 v24, 10, v24")
    a("v_lshrrev_b32 v25, 5, v0")
    for i in range(4):
        a(f"s_lshl_b32 s72, s{s_wg}, 2")
        a(f"s_add_u32 s72, s72, {i}")
        a("s_lshr_b32 s73, s72, 6")
        a("s_lshl_b32 s73, s73, 15")
        a("s_and_b32 s74, s72, 63")
        a("s_lshl_b32 s74, s74, 4")
        a("s_add_u32 s73, s73, s74")
        a("s_mov_b32 exec_lo, -1"); a("s_mov_b32 exec_hi, 0")
        a(f"buffer_load_dwordx4 {vr(28+4*i,4)}, v24, s[60:63], s73 offen")
        a("s_mov_b32 exec_lo, 0"); a("s_mov_b32 exec_hi, -1")
        a(f"buffer_load_dwordx4 {vr(28+4*i,4)}, v24, s[64:67], s73 offen")
    a("s_mov_b64 exec, -1")
    a("v_and_b32 v26, 31, v0")
    a("v_lshlrev_b32 v26, 1, v26")
    a("v_lshl_add_u32 v26, v25, 12, v26")
    for i in range(2):
        a(f"s_lshl_b32 s72, s{s_wg}, 1")
        a(f"s_add_u32 s72, s72, {i}")
        a("s_lshr_b32 s73, s72, 5")
        a("s_lshl_b32 s73, s73, 6")
        a("s_and_b32 s74, s72, 31")
        a("s_lshl_b32 s74, s74, 14")
        a("s_add_u32 s73, s73, s74")
        for jj in range(8):
            row = 8*(jj >> 2) + (jj & 3)
            a(f"s_add_u32 s75, s73, {row*1024}")
            a(f"buffer_load_ushort v{52+8*i+jj}, v26, s[68:71], s75 offen")
    a("s_waitcnt vmcnt(0)")
    for i in range(2):
        for p in range(4):
            a(f"v_lshl_or_b32 v{44+4*i+p}, v{52+8*i+2*p+1}, 16, v{52+8*i+2*p}")
    for i in range(4):
        a(f"s_lshl_b32 s72, s{s_wg}, 12")
        a(f"s_add_u32 s72, s72, {CF + i*1024}")
        a(f"buffer_store_dwordx4 {vr(28+4*i,4)}, v{V_L16}, {sr(S_WS,4)}, s72 offen")
    for i in range(2):
        a(f"s_lshl_b32 s72, s{s_wg}, 11")
        a(f"s_add_u32 s72, s72, {WF + i*1024}")
        a(f"buffer_store_dwordx4 {vr(44+4*i,4)}, v{V_L16}, {sr(S_WS,4)}, s72 offen")

def c1_epi_A(a):
    F = V_F
    a(f"s_mov_b32 s{S_TMP}, {hex(QSCALE)}")
    for i in range(16):
        a(f"v_mul_f32 v{V_D0+i}, s{S_TMP}, v{V_D0+i}")
    for i in range(8):
        a(f"v_cvt_pk_bf16_f32 v{F+i}, v{V_D0+2*i}, v{V_D0+2*i+1}")
    for i in range(8):
        a(f"v_cvt_pk_bf16_f32 v{F+8+i}, v{V_D1+2*i}, v{V_D1+2*i+1}")
    for i in range(8):
        a(f"v_cvt_pk_bf16_f32 v{F+16+i}, v{V_D2+2*i}, v{V_D2+2*i+1}")

def gen_k1(prof=False):
    a = Asm()
    a("s_cmp_ge_u32 s2, 256")
    a("s_cbranch_scc1 L_k1_exit")
    if prof: stamp(a, 0)
    c1_setup_common(a)
    a(f"s_cmp_ge_u32 s{S_WV}, 8")
    a("s_cbranch_scc1 L_k1_roleB")
    a(f"s_cmp_ge_u32 s{S_WV}, 4")
    a("s_cbranch_scc1 L_k1_loader")
    T = V_T
    c1_srds(a)
    c1_roleA(a, prof)
    if prof: stamp(a, 4)
    c1_epi_A(a)
    a(f"s_lshl_b32 s50, s{S_RB}, 2")
    a(f"s_add_u32 s50, s50, s{S_T}")
    a(f"s_lshl_b32 s51, s{S_HP}, 7")
    a("s_add_u32 s51, s51, s50")
    for hh in range(2):
        a(f"s_add_u32 s52, s51, {64*hh}")
        a("s_lshl_b32 s53, s52, 10")
        a(f"s_add_u32 s53, s53, {QF}")
        a(f"buffer_store_dwordx4 {vr(V_F+4*hh,4)}, v{V_L16}, {sr(S_WS,4)}, s53 offen")
        a("s_lshl_b32 s53, s52, 11")
        a(f"s_add_u32 s53, s53, {KV}")
        a(f"buffer_store_dwordx4 {vr(V_F+8+4*hh,4)}, v{V_L16}, {sr(S_WS,4)}, s53 offen")
    a("s_lshl_b32 s53, s51, 11")
    a(f"s_add_u32 s53, s53, {KV + 1024}")
    a(f"v_bfe_u32 v{T}, v0, 4, 1")
    a(f"v_lshlrev_b32 v{T}, 17, v{T}")
    a(f"v_lshrrev_b32 v{T+1}, 5, v0")
    a(f"v_lshl_add_u32 v{T}, v{T+1}, 8, v{T}")
    a(f"v_and_b32 v{T+1}, 15, v0")
    a(f"v_lshl_add_u32 v{T}, v{T+1}, 4, v{T}")
    a(f"buffer_store_dwordx4 {vr(V_F+16,4)}, v{T}, {sr(S_WS,4)}, s53 offen")
    a(f"buffer_store_dwordx4 {vr(V_F+20,4)}, v{T}, {sr(S_WS,4)}, s53 offen offset:512")
    a("s_barrier"); a("s_barrier")
    a("s_branch L_k1_end")
    a.label("L_k1_loader")
    c1_loader(a, prof)
    if prof: stamp(a, 4)
    gate_rows(a)
    a(f"s_cmp_lg_u32 s{S_T}, 0")
    a("s_cbranch_scc1 L_k1_noprep")
    prep_weights(a, 2)
    a.label("L_k1_noprep")
    a("s_barrier"); a("s_barrier")
    a("s_branch L_k1_end")
    a.label("L_k1_roleB")
    c1_srds(a)
    c1_roleB(a, prof)
    if prof: stamp(a, 4)
    a("s_barrier")
    c1_u_to_lds(a)
    a("s_waitcnt lgkmcnt(0)")
    a("s_barrier")
    load_ssm_srds(a, 60)
    helper_u_from_lds(a, S_T)
    helper_params(a, S_T, S_HP, 60)
    a("s_waitcnt lgkmcnt(0)")
    a("s_lshl_b32 s52, s2, 2")
    a(f"s_add_u32 s52, s52, s{S_T}")
    a("s_lshl_b32 s52, s52, 13")
    a(f"s_add_u32 s52, s52, {UF}")
    for c in range(8):
        a(f"s_add_u32 s53, s52, {c*1024}")
        a(f"buffer_store_dwordx4 {vr(H_UR+4*c,4)}, v{V_L16}, {sr(S_WS,4)}, s53 offen")
    local_scan(a, H_UR, H_UI, H_R["lr"], H_R["li"], H_HR, H_HI, tmp=H_R["t"])
    ks8(a, H_HR, H_HI)
    a(f"v_lshlrev_b32 v{H_CH}, 3, v{H_CH}")
    a(f"s_lshl_b32 s52, s{S_RB}, 12")
    a(f"s_add_u32 s52, s52, {EF}")
    a("s_mov_b32 exec_lo, 0x80808080"); a("s_mov_b32 exec_hi, 0x80808080")
    a(f"buffer_store_dwordx2 v[{H_HR}:{H_HI}], v{H_CH}, {sr(S_WS,4)}, s52 offen")
    a.label("L_k1_end")
    if prof:
        a("s_waitcnt vmcnt(0)")
        stamp(a, 5)
        dump_stamps(a, 6, S_WV, S_WS)
    a.label("L_k1_exit")
    return kernel_block("p1_kernel", a.text(), vgpr=128)
```

```python
from k_common import *
from prof import *
from k_c1 import decode_c

A_L16, A_VO = 1, 2
A_Q = 4
A_O = 20
A_S0, A_S1 = 84, 100
A_P = 116
A_K = 124
A_V = 132
A_T = 148
A_M = 160
A_NV = 164
S_WS = 4
S_HP, S_RB, S_WV, S_HEAD, S_KH = 8, 9, 10, 11, 12
S_HB = 14
S_CUR, S_NXT, S_CH = 15, 16, 17
S_MASK = 22
S_IT = 24
SC1 = " sc1"
NOLOAD = False

def O(qt): return A_O + 16 * qt
def Q(qt): return A_Q + 4 * qt

def load_k(a, buf, so, off):
    if NOLOAD: return
    a(f"buffer_load_dwordx4 {vr(A_K+4*buf,4)}, v{A_L16}, {sr(S_WS,4)}, s{so} offen offset:{off}{SC1}")
def load_v(a, buf, so, off):
    if NOLOAD: return
    a(f"s_mov_b64 exec, s[{S_MASK}:{S_MASK+1}]")
    a(f"buffer_load_dwordx4 {vr(A_V+8*buf,4)}, v{A_VO}, {sr(S_WS,4)}, s{so} offen offset:{off+1024}{SC1}")
    a(f"buffer_load_dwordx4 {vr(A_V+8*buf+4,4)}, v{A_VO}, {sr(S_WS,4)}, s{so} offen offset:{off+1536}{SC1}")
    a("s_mov_b64 exec, -1")

def next_pair(a):
    a(f"s_mov_b32 s{S_CUR}, s{S_NXT}")
    a(f"s_add_u32 s{S_CH}, s{S_CH}, 1")
    a(f"s_and_b32 s{S_CH}, s{S_CH}, 15")
    a(f"s_lshl_b32 s{S_NXT}, s{S_CH}, 13")
    a(f"s_add_u32 s{S_NXT}, s{S_NXT}, s{S_HB}")

def unit(a, u, hooks):
    n, qt = u >> 2, u & 3
    Sc, Sn = (A_S0, A_S1) if u % 2 == 0 else (A_S1, A_S0)
    pu = (u - 1) % 8; pn, pqt = pu >> 2, pu & 3
    nu = (u + 1) % 8; nn, nqt = nu >> 2, nu & 3
    ex = lambda i: a(f"v_exp_f32 v{Sc+i}, v{Sc+i}")
    cv = lambda i: a(f"v_cvt_pk_bf16_f32 v{A_P+i}, v{Sc+2*i}, v{Sc+2*i+1}")
    h = lambda name: hooks.get(name, lambda: None)()
    pcv = lambda i: a(f"v_cvt_pk_bf16_f32 v{A_P+i}, v{Sn+2*i}, v{Sn+2*i+1}")
    h("pre")
    ex(0); pcv(6); ex(1); pcv(7); ex(2); ex(3)
    mfma32(a, O(pqt), A_V + 8*pn + 4, A_P + 4, O(pqt))
    h("after_pv1")
    cv(0); ex(4); ex(5); cv(1)
    h("before_qk")
    mfma32(a, Sn, A_K + 4*nn, Q(nqt), "0")
    h("after_qk")
    ex(6); ex(7); cv(2); ex(8); ex(9); cv(3)
    ex(10); ex(11)
    mfma32(a, O(qt), A_V + 8*n, A_P, O(qt))
    cv(4); ex(12); ex(13); cv(5); ex(14); ex(15)

def init_v_consts(a):
    a(f"v_and_b32 v{A_T}, 27, v0")
    a(f"v_cmp_eq_u32 vcc, 16, v{A_T}")
    a(f"v_mov_b32 v{A_T}, 0x3f803f80")
    a("s_nop 0")
    a(f"v_cndmask_b32 v{A_T}, 0, v{A_T}, vcc")
    for i in range(16):
        a(f"v_mov_b32 v{A_V+i}, v{A_T}")

def attn_prologue_loads(a):
    load_k(a, 0, S_NXT, 0)
    load_v(a, 0, S_NXT, 0)
    load_k(a, 1, S_NXT, 2048)

def attn_loop(a, tag):
    for i in range(64):
        a(f"v_mov_b32 v{A_O+i}, 0")
    for i in range(4, 6):
        a(f"v_mov_b32 v{A_P+i}, 0")
    for i in range(12, 16):
        a(f"v_mov_b32 v{A_S1+i}, 0")
    a("s_waitcnt vmcnt(3)")
    mfma32(a, A_S0, A_K, Q(0), "0")
    a("s_nop 7")
    a(f"s_mov_b32 s{S_IT}, 0")
    a.label(f"L_at_loop_{tag}")
    for u in range(8):
        hooks = {}
        if u == 0:
            def pre0():
                next_pair(a)
                a("s_waitcnt vmcnt(1)")
            hooks["pre"] = pre0
            hooks["after_pv1"] = lambda: load_v(a, 1, S_CUR, 2048)
        if u == 2:
            hooks["after_qk"] = lambda: load_k(a, 0, S_NXT, 0)
        if u == 3:
            hooks["before_qk"] = lambda: a("s_waitcnt vmcnt(3)")
        if u == 4:
            hooks["pre"] = lambda: a("s_waitcnt vmcnt(1)")
            hooks["after_pv1"] = lambda: load_v(a, 0, S_NXT, 0)
        if u == 6:
            hooks["after_qk"] = lambda: load_k(a, 1, S_NXT, 2048)
        if u == 7:
            hooks["before_qk"] = lambda: a("s_waitcnt vmcnt(3)")
        unit(a, u, hooks)
    a(f"s_add_u32 s{S_IT}, s{S_IT}, 1")
    a(f"s_cmp_lt_u32 s{S_IT}, 16")
    a(f"s_cbranch_scc1 L_at_loop_{tag}")
    a("s_nop 0")
    for i in (6, 7):
        a(f"v_cvt_pk_bf16_f32 v{A_P+i}, v{A_S1+2*i}, v{A_S1+2*i+1}")
    a("s_nop 1")
    mfma32(a, O(3), A_V + 8 + 4, A_P + 4, O(3))
    a("s_waitcnt vmcnt(0)")
    a("s_nop 15")

def attn_combine(a, lds_base):
    T = A_T
    a(f"s_lshl_b32 s26, s{S_WV}, 0")
    a(f"s_mul_i32 s26, s26, 6144")
    a(f"s_add_u32 s26, s26, {lds_base}")
    a(f"v_add_u32 v{T}, s26, v{A_L16}")
    a(f"s_cmp_eq_u32 s{S_KH}, 0")
    a("s_cbranch_scc1 L_cmb_k0")
    for t in range(2):
        for c in range(3):
            a(f"ds_write_b128 v{T}, {vr(O(t)+4*c,4)} offset:{t*3072 + c*1024}")
    a("s_waitcnt lgkmcnt(0)")
    for i in range(12):
        a(f"v_mov_b32 v{O(0)+i}, v{O(2)+i}")
        a(f"v_mov_b32 v{O(1)+i}, v{O(3)+i}")
    a("s_branch L_cmb_x")
    a.label("L_cmb_k0")
    for t in range(2):
        for c in range(3):
            a(f"ds_write_b128 v{T}, {vr(O(2+t)+4*c,4)} offset:{t*3072 + c*1024}")
    a.label("L_cmb_x")
    a("s_waitcnt lgkmcnt(0)")
    a("s_barrier")
    a(f"s_xor_b32 s26, s{S_WV}, 1")
    a(f"s_mul_i32 s26, s26, 6144")
    a(f"s_add_u32 s26, s26, {lds_base}")
    a(f"v_add_u32 v{T}, s26, v{A_L16}")
    for t in range(2):
        for c in range(3):
            a(f"ds_read_b128 {vr(O(2+t)+4*c,4)}, v{T} offset:{t*3072 + c*1024}")
    a("s_waitcnt lgkmcnt(0)")
    for t in range(2):
        for i in range(9):
            a(f"v_add_f32 v{O(t)+i}, v{O(t)+i}, v{O(2+t)+i}")

def attn_check_fallback(a, t, tag):
    T = A_T; Ob = O(t)
    a(f"v_max3_f32 v{T}, |v{Ob}|, |v{Ob+1}|, |v{Ob+2}|")
    a(f"v_max3_f32 v{T}, v{T}, |v{Ob+3}|, |v{Ob+4}|")
    a(f"v_max3_f32 v{T}, v{T}, |v{Ob+5}|, |v{Ob+6}|")
    a(f"v_max_f32 v{T}, v{T}, |v{Ob+7}|")
    a("s_mov_b32 s26, 0x7f000000")
    a("s_mov_b32 s27, 0x21800000")
    a("s_mov_b32 s28, 0x5d800000")
    a(f"v_cmp_gt_f32 s[30:31], s26, v{T}")
    a(f"v_cmp_le_f32 s[32:33], s27, v{Ob+8}")
    a(f"v_cmp_ge_f32 vcc, s28, v{Ob+8}")
    a("s_and_b64 s[30:31], s[30:31], s[32:33]")
    a("s_and_b64 s[30:31], s[30:31], vcc")
    a("s_cmp_eq_u64 s[30:31], exec")
    a(f"s_cbranch_scc1 L_at_ok_{tag}")
    M = A_M; S = A_S0
    a(f"s_cmp_eq_u32 s{S_KH}, 0")
    a(f"s_cbranch_scc1 L_at_sq0_{tag}")
    for i in range(4): a(f"v_mov_b32 v{A_K+4+i}, v{Q(2+t)+i}")
    a(f"s_branch L_at_sq1_{tag}")
    a.label(f"L_at_sq0_{tag}")
    for i in range(4): a(f"v_mov_b32 v{A_K+4+i}, v{Q(t)+i}")
    a.label(f"L_at_sq1_{tag}")
    a(f"v_mov_b32 v{M}, 0xff800000")
    for i in range(16):
        a(f"v_mov_b32 v{Ob+i}, 0")
    a(f"s_lshl_b32 s29, s{S_HEAD}, 17")
    a(f"s_add_u32 s29, s29, {KV}")
    a("s_mov_b32 s34, 0")
    a.label(f"L_at_slow_{tag}")
    load_k(a, 0, 29, 0)
    load_v(a, 0, 29, 0)
    a("s_waitcnt vmcnt(0)")
    mfma32(a, S, A_K, A_K + 4, "0")
    a("s_nop 15")
    a("s_nop 3")
    a(f"v_max3_f32 v{T}, v{S}, v{S+1}, v{S+2}")
    for i in range(3, 15, 2):
        a(f"v_max3_f32 v{T}, v{T}, v{S+i}, v{S+i+1}")
    a(f"v_max_f32 v{T}, v{T}, v{S+15}")
    a(f"v_mov_b32 v{T+1}, v{T}")
    a("s_nop 1")
    a(f"v_permlane32_swap_b32 v{T}, v{T+1}")
    a("s_nop 1")
    a(f"v_max3_f32 v{T}, v{T}, v{T+1}, v{M}")
    a(f"v_sub_f32 v{T+1}, v{M}, v{T}")
    a(f"v_exp_f32 v{T+1}, v{T+1}")
    a(f"v_mov_b32 v{M}, v{T}")
    for i in range(16):
        a(f"v_sub_f32 v{S+i}, v{S+i}, v{T}")
    for i in range(16):
        a(f"v_exp_f32 v{S+i}, v{S+i}")
    for i in range(16):
        a(f"v_mul_f32 v{Ob+i}, v{Ob+i}, v{T+1}")
    for i in range(8):
        a(f"v_cvt_pk_bf16_f32 v{A_P+i}, v{S+2*i}, v{S+2*i+1}")
    a("s_nop 1")
    mfma32(a, Ob, A_V, A_P, Ob)
    mfma32(a, Ob, A_V + 4, A_P + 4, Ob)
    a("s_add_u32 s29, s29, 2048")
    a("s_nop 15")
    a("s_nop 3")
    a("s_add_u32 s34, s34, 1")
    a("s_cmp_lt_u32 s34, 64")
    a(f"s_cbranch_scc1 L_at_slow_{tag}")
    a.label(f"L_at_ok_{tag}")

def attn_normalize(a, t, dst):
    T = A_T; Ob = O(t)
    a(f"v_rcp_f32 v{T}, v{Ob+8}")
    a("s_nop 0")
    for i in range(8):
        a(f"v_mul_f32 v{Ob+i}, v{Ob+i}, v{T}")
    for i in range(4):
        a(f"v_cvt_pk_bf16_f32 v{dst+i}, v{Ob+2*i}, v{Ob+2*i+1}")

def gen_k2(force_slow=False, prof=False):
    a = Asm()
    a("s_cmp_ge_u32 s2, 256")
    a("s_cbranch_scc1 L_k2_exit")
    if prof: stamp(a, 0)
    load_ptr(a, S_WS, "ws")
    a("v_lshrrev_b32 v2, 6, v0")
    a("v_and_b32 v0, 63, v0")
    a(f"v_readfirstlane_b32 s{S_WV}, v2")
    decode_c(a, S_HP, S_RB, 26)
    a(f"v_lshlrev_b32 v{A_L16}, 4, v0")
    a(f"s_and_b32 s{S_KH}, s{S_WV}, 1")
    a(f"s_bfe_u32 s26, s{S_WV}, 0x10001")
    a(f"s_lshl_b32 s{S_HEAD}, s{S_HP}, 1")
    a(f"s_add_u32 s{S_HEAD}, s{S_HEAD}, s26")
    a(f"s_mov_b32 s{S_MASK}, 0x0000ffff"); a(f"s_mov_b32 s{S_MASK+1}, 0x0000ffff")
    a(f"v_and_b32 v{A_VO}, 15, v0")
    a(f"v_lshlrev_b32 v{A_VO}, 4, v{A_VO}")
    a(f"v_lshrrev_b32 v{A_T}, 5, v0")
    a(f"v_lshl_add_u32 v{A_VO}, v{A_T}, 8, v{A_VO}")
    init_v_consts(a)
    a(f"s_lshl_b32 s{S_HB}, s{S_HEAD}, 6")
    a(f"s_lshl_b32 s26, s{S_KH}, 1")
    a(f"s_add_u32 s{S_HB}, s{S_HB}, s26")
    a(f"s_lshl_b32 s{S_HB}, s{S_HB}, 11")
    a(f"s_add_u32 s{S_HB}, s{S_HB}, {KV}")
    a(f"s_mov_b32 s{S_CH}, s{S_RB}")
    a(f"s_lshl_b32 s{S_NXT}, s{S_CH}, 13")
    a(f"s_add_u32 s{S_NXT}, s{S_NXT}, s{S_HB}")
    a("s_waitcnt lgkmcnt(0)")
    make_srd(a, S_WS, WS_USED)
    a(f"s_lshl_b32 s26, s{S_HEAD}, 6")
    a(f"s_lshl_b32 s27, s{S_RB}, 2")
    a("s_add_u32 s26, s26, s27")
    a("s_lshl_b32 s26, s26, 10")
    a(f"s_add_u32 s26, s26, {QF}")
    for qt in range(4):
        a(f"buffer_load_dwordx4 {vr(Q(qt),4)}, v{A_L16}, {sr(S_WS,4)}, s26 offen offset:{qt*1024}")
    attn_prologue_loads(a)
    if prof: stamp(a, 1)
    attn_loop(a, "k2")
    if prof: stamp(a, 2)
    attn_combine(a, 0)
    for t in range(2):
        if force_slow:
            a(f"v_mov_b32 v{O(t)+8}, 0")
        attn_check_fallback(a, t, f"k2_{t}")
        attn_normalize(a, t, A_S1 + 4*t)
    a(f"s_lshl_b32 s26, s{S_RB}, 1")
    a(f"s_add_u32 s26, s26, s{S_KH}")
    a("s_lshl_b32 s26, s26, 6")
    a(f"s_add_u32 s26, s26, s{S_HEAD}")
    a("s_lshl_b32 s26, s26, 10")
    a(f"s_add_u32 s26, s26, {OF}")
    a(f"buffer_store_dwordx4 {vr(A_S1,4)}, v{A_L16}, {sr(S_WS,4)}, s26 offen")
    a("s_add_u32 s26, s26, 32768")
    a(f"buffer_store_dwordx4 {vr(A_S1+4,4)}, v{A_L16}, {sr(S_WS,4)}, s26 offen")
    if prof:
        a("s_waitcnt vmcnt(0)")
        stamp(a, 3)
        dump_stamps(a, 4, S_WV, S_WS)
    a.label("L_k2_exit")
    return kernel_block("attn_kernel", a.text(), vgpr=A_NV)
```

```python
from k_common import *
from prof import *
import k_c1
from k_c1 import decode_c, H_UR, H_UI, H_R, H_HR, H_HI, H_TR, H_TI, H_CH, H_SEG, H_MM, helper_params, load_ssm_srds, ks8

S_WS = 4
S_HP, S_RB, S_WV = 28, 29, 30
H_E = 96
H_OR, H_OI = 128, 136
H_L16 = 1
HT_PITCH = 320
HT_WAVE = 16 * HT_PITCH

def ssm_carry(a, s_rb, s_ws, tag):
    T = H_R["t"]
    a(f"v_lshlrev_b32 v{T}, 3, v{H_CH}")
    a(f"s_mov_b32 s40, {EF}")
    for c in range(16):
        a(f"buffer_load_dwordx2 {vr(H_E+2*c,2)}, v{T}, {sr(s_ws,4)}, s40 offen sc1")
        a("s_add_u32 s40, s40, 4096")

def ssm_horner(a, s_rb, tag, hr, hi):
    nu = H_R["mu"] + 6
    T = H_R["t"]
    a(f"v_mov_b32 v{hr}, 0"); a(f"v_mov_b32 v{hi}, 0")
    for c in range(15):
        a(f"s_cmp_le_u32 s{s_rb}, {c}")
        a(f"s_cbranch_scc1 L_horner_done_{tag}")
        a(f"v_fma_f32 v{T}, -v{nu+1}, v{hi}, v{H_E+2*c}")
        a(f"v_fma_f32 v{T+1}, v{nu+1}, v{hr}, v{H_E+2*c+1}")
        a(f"v_fma_f32 v{hr}, v{nu}, v{hr}, v{T}")
        a(f"v_fma_f32 v{hi}, v{nu}, v{hi}, v{T+1}")
    a.label(f"L_horner_done_{tag}")

def ssm_finish(a, s_rb, s_hp, s_hw, s_ws, lds_base, tag, store_flags=""):
    T = H_R["t"]
    CR, CI = H_MM + 2, H_MM + 3
    local_scan(a, H_UR, H_UI, H_R["lr"], H_R["li"], H_HR, H_HI, tmp=T)
    a("s_waitcnt vmcnt(0)")
    ssm_horner(a, s_rb, tag, CR, CI)
    a(f"v_mov_b32 v{H_TR}, 0"); a(f"v_mov_b32 v{H_TI}, 0")
    a(f"v_cmp_eq_u32 vcc, 0, v{H_SEG}")
    a(f"v_mov_b32_dpp v{H_TR}, v{H_HR} row_shr:1 row_mask:0xf bank_mask:0xf")
    a(f"v_mov_b32_dpp v{H_TI}, v{H_HI} row_shr:1 row_mask:0xf bank_mask:0xf")
    a(f"v_cndmask_b32 v{H_HR}, v{H_TR}, v{CR}, vcc")
    a(f"v_cndmask_b32 v{H_HI}, v{H_TI}, v{CI}, vcc")
    a("s_nop 1")
    ks8(a, H_HR, H_HI)
    a(f"v_add_f32 v{CR}, v{H_R['cr']}, v{H_R['cr']}")
    a(f"v_add_f32 v{CI}, v{H_R['ci']}, v{H_R['ci']}")
    def emit(t):
        a(f"v_mul_f32 v{H_UR+t}, v{CR}, v{H_HR}")
        a(f"v_mul_f32 v{H_UI+t}, v{CR}, v{H_HI}")
        a(f"v_fma_f32 v{H_UR+t}, -v{CI}, v{H_HI}, v{H_UR+t}")
        a(f"v_fma_f32 v{H_UI+t}, -v{CI}, v{H_HR}, -v{H_UI+t}")
    local_scan(a, H_UR, H_UI, H_R["lr"], H_R["li"], H_HR, H_HI, init_zero=False, emit=emit, tmp=T)
    for i in range(8):
        a(f"v_cvt_pk_bf16_f32 v{H_OR+i}, v{H_UR+2*i}, v{H_UR+2*i+1}")
        a(f"v_cvt_pk_bf16_f32 v{H_OI+i}, v{H_UI+2*i}, v{H_UI+2*i+1}")
    a(f"v_lshrrev_b32 v{T}, 3, v0")
    a(f"v_mul_u32_u24 v{T}, {HT_PITCH}, v{T}")
    a(f"v_lshl_add_u32 v{T}, v{H_SEG}, 5, v{T}")
    a(f"s_mul_i32 s40, s{s_hw}, {HT_WAVE}")
    a(f"s_add_u32 s40, s40, {lds_base}")
    a(f"v_add_u32 v{T}, s40, v{T}")
    for c in range(2):
        a(f"ds_write_b128 v{T}, {vr(H_OR+4*c,4)} offset:{16*c}")
        a(f"ds_write_b128 v{T}, {vr(H_OI+4*c,4)} offset:{8*HT_PITCH + 16*c}")
    a(f"v_lshrrev_b32 v{T+1}, 5, v0")
    a(f"v_bfe_u32 v{T+2}, v0, 2, 2")
    a(f"v_lshl_add_u32 v{T+1}, v{T+1}, 3, v{T+2}")
    a(f"v_mul_u32_u24 v{T+1}, {HT_PITCH}, v{T+1}")
    a(f"v_and_b32 v{T+2}, 1, v0")
    a(f"v_lshlrev_b32 v{T+2}, 5, v{T+2}")
    a(f"v_bfe_u32 v{T+3}, v0, 4, 1")
    a(f"v_lshl_add_u32 v{T+2}, v{T+3}, 4, v{T+2}")
    a(f"v_bfe_u32 v{T+3}, v0, 1, 1")
    a(f"v_lshl_add_u32 v{T+2}, v{T+3}, 3, v{T+2}")
    a(f"v_add3_u32 v{T+1}, v{T+1}, v{T+2}, s40")
    a("s_waitcnt lgkmcnt(0)")
    for t in range(4):
        for e in range(2):
            a(f"ds_read_b64_tr_b16 {vr(H_E+4*t+2*e,2)}, v{T+1} offset:{4*e*HT_PITCH + t*64}")
    a(f"s_lshl_b32 s40, s{s_rb}, 8")
    a(f"s_lshl_b32 s41, s{s_hp}, 2")
    a("s_add_u32 s40, s40, s41")
    a(f"s_add_u32 s40, s40, s{s_hw}")
    a("s_lshl_b32 s40, s40, 10")
    a(f"s_add_u32 s40, s40, {HF}")
    a("s_waitcnt lgkmcnt(0)")
    for t in range(4):
        a(f"buffer_store_dwordx4 {vr(H_E+4*t,4)}, v{H_L16}, {sr(s_ws,4)}, s40 offen{store_flags}")
        a("s_add_u32 s40, s40, 65536")

def gen_k3(prof=False):
    a = Asm()
    a("s_cmp_ge_u32 s2, 256")
    a("s_cbranch_scc1 L_k3_exit")
    load_ptr(a, S_WS, "ws")
    a("v_lshrrev_b32 v2, 6, v0")
    a("v_and_b32 v0, 63, v0")
    a(f"v_readfirstlane_b32 s{S_WV}, v2")
    decode_c(a, S_HP, S_RB, 36)
    a(f"v_lshlrev_b32 v{H_L16}, 4, v0")
    load_ssm_srds(a, 60)
    make_srd(a, S_WS, WS_USED)
    a("s_lshl_b32 s52, s2, 2")
    a(f"s_add_u32 s52, s52, s{S_WV}")
    a("s_lshl_b32 s52, s52, 13")
    a(f"s_add_u32 s52, s52, {UF}")
    for c in range(8):
        a(f"s_add_u32 s53, s52, {c*1024}")
        a(f"buffer_load_dwordx4 {vr(H_UR+4*c,4)}, v{H_L16}, {sr(S_WS,4)}, s53 offen")
    helper_params(a, S_WV, S_HP, 60)
    ssm_carry(a, S_RB, S_WS, "k3")
    ssm_finish(a, S_RB, S_HP, S_WV, S_WS, 0, "k3")
    a.label("L_k3_exit")
    return kernel_block("scan_kernel", a.text(), vgpr=144)
```

```python
from k_common import *
from prof import *
from k_c1 import decode_c

S_WS, S_X, S_OUT, S_DS = 4, 8, 12, 16
S_HP, S_RB, S_WV = 28, 29, 30
S_T, S_CT = 31, 32
S_A, S_B = 33, 34
F_L16 = 1
F_D = 8
F_BUF = 24
F_T = 100

def gemm_stream(a, nsteps, NB, tag):
    def issue(k):
        b = F_BUF + 8 * (k % NB)
        a(f"buffer_load_dwordx4 {vr(b,4)}, v{F_L16}, {sr(S_WS,4)}, s{S_A} offen sc1")
        a(f"buffer_load_dwordx4 {vr(b+4,4)}, v{F_L16}, {sr(S_WS,4)}, s{S_B} offen sc1")
        a(f"s_add_u32 s{S_A}, s{S_A}, 1024")
        a(f"s_add_u32 s{S_B}, s{S_B}, 1024")
    for k in range(min(NB, nsteps)):
        issue(k)
    for k in range(nsteps):
        left = min(NB - 1, nsteps - 1 - k)
        a(f"s_waitcnt vmcnt({2*left})")
        b = F_BUF + 8 * (k % NB)
        mfma32(a, F_D, b, b + 4, F_D)
        if k + NB < nsteps:
            issue(k + NB)

def gen_k4(prof=False):
    a = Asm()
    a("s_cmp_ge_u32 s2, 256")
    a("s_cbranch_scc1 L_k4_exit")
    load_ptr(a, S_WS, "ws"); load_ptr(a, S_X, "x"); load_ptr(a, S_OUT, "out"); load_ptr(a, S_DS, "dskip")
    a("v_lshrrev_b32 v2, 6, v0")
    a("v_and_b32 v0, 63, v0")
    a(f"v_readfirstlane_b32 s{S_WV}, v2")
    decode_c(a, S_HP, S_RB, 36)
    a(f"v_lshlrev_b32 v{F_L16}, 4, v0")
    a(f"s_and_b32 s36, s{S_WV}, 1")
    a(f"s_and_b32 s37, s{S_HP}, 1")
    a("s_lshl_b32 s37, s37, 1")
    a(f"s_lshl_b32 s{S_T}, s{S_RB}, 2")
    a(f"s_add_u32 s{S_T}, s{S_T}, s37")
    a(f"s_add_u32 s{S_T}, s{S_T}, s36")
    a(f"s_bfe_u32 s36, s{S_WV}, 0x10001")
    a(f"s_lshr_b32 s{S_CT}, s{S_HP}, 1")
    a(f"s_lshl_b32 s{S_CT}, s{S_CT}, 1")
    a(f"s_add_u32 s{S_CT}, s{S_CT}, s36")
    for i in range(16):
        a(f"v_mov_b32 v{F_D+i}, 0")
    a("s_waitcnt lgkmcnt(0)")
    make_srd(a, S_WS, WS_USED); make_srd(a, S_X, 2 << 20); make_srd(a, S_OUT, 4 << 20); make_srd(a, S_DS, 1024)
    a(f"s_cmp_ge_u32 s{S_WV}, 8")
    a("s_cbranch_scc1 L_k4_y")
    a(f"s_lshr_b32 s36, s{S_WV}, 2")
    a("s_lshl_b32 s36, s36, 4")
    a(f"s_lshl_b32 s{S_A}, s{S_T}, 5")
    a(f"s_add_u32 s{S_A}, s{S_A}, s36")
    a(f"s_lshl_b32 s{S_A}, s{S_A}, 10")
    a(f"s_add_u32 s{S_A}, s{S_A}, {OF}")
    a(f"s_lshl_b32 s{S_B}, s{S_CT}, 5")
    a(f"s_add_u32 s{S_B}, s{S_B}, s36")
    a(f"s_lshl_b32 s{S_B}, s{S_B}, 10")
    a(f"s_add_u32 s{S_B}, s{S_B}, {WF}")
    gemm_stream(a, 16, 8, "a")
    a("s_nop 15")
    a(f"s_lshl_b32 s36, s{S_WV}, 12")
    a(f"v_add_u32 v{F_T}, s36, v{F_L16}")
    for c in range(4):
        a(f"ds_write_b128 v{F_T}, {vr(F_D+4*c,4)} offset:{c*1024}")
    a("s_waitcnt lgkmcnt(0)")
    a("s_barrier")
    a("s_branch L_k4_exit")
    a.label("L_k4_y")
    a(f"s_lshl_b32 s{S_A}, s{S_T}, 16")
    a(f"s_add_u32 s{S_A}, s{S_A}, {HF}")
    a(f"s_lshl_b32 s{S_B}, s{S_CT}, 16")
    a(f"s_add_u32 s{S_B}, s{S_B}, {CF}")
    gemm_stream(a, 64, 8, "y")
    T = F_T
    a(f"v_and_b32 v{T}, 31, v0")
    a(f"s_lshl_b32 s36, s{S_CT}, 5")
    a(f"v_add_u32 v{T}, s36, v{T}")
    a(f"v_lshlrev_b32 v{T+1}, 1, v{T}")
    a(f"buffer_load_ushort v{T+2}, v{T+1}, {sr(S_DS,4)}, 0 offen")
    a(f"v_lshrrev_b32 v{T+3}, 5, v0")
    a(f"v_lshl_add_u32 v{T+4}, v{T+3}, 14, v{T+1}")
    a(f"s_lshl_b32 s37, s{S_T}, 15")
    for r in range(16):
        a(f"s_add_u32 s38, s37, {r*1024}")
        a(f"buffer_load_ushort v{F_BUF+r}, v{T+4}, {sr(S_X,4)}, s38 offen")
    a(f"v_lshlrev_b32 v{T+5}, 6, v{T+3}")
    a(f"s_lshl_b32 s38, s{S_T}, 7")
    a(f"s_add_u32 s38, s38, {GF}")
    for c in range(4):
        a(f"buffer_load_dwordx4 {vr(F_BUF+16+4*c,4)}, v{T+5}, {sr(S_WS,4)}, s38 offen offset:{16*c} sc1")
    a("s_barrier")
    a(f"s_sub_u32 s36, s{S_WV}, 8")
    a("s_lshl_b32 s36, s36, 12")
    a(f"v_add_u32 v{T+6}, s36, v{F_L16}")
    for c in range(4):
        a(f"ds_read_b128 {vr(F_BUF+32+4*c,4)}, v{T+6} offset:{c*1024}")
        a(f"ds_read_b128 {vr(F_BUF+48+4*c,4)}, v{T+6} offset:{16384 + c*1024}")
    a("s_waitcnt vmcnt(0) lgkmcnt(0)")
    a(f"v_lshlrev_b32 v{T+2}, 16, v{T+2}")
    a(f"v_lshlrev_b32 v{T+7}, 15, v{T+3}")
    a(f"v_lshl_add_u32 v{T+7}, v{T}, 2, v{T+7}")
    a(f"s_lshl_b32 s37, s{S_T}, 16")
    for r in range(16):
        xr = F_BUF + r; g = F_BUF + 16 + r; p0 = F_BUF + 32 + r; p1 = F_BUF + 48 + r
        a(f"v_lshlrev_b32 v{xr}, 16, v{xr}")
        a(f"v_fmac_f32 v{F_D+r}, v{xr}, v{T+2}")
        a(f"v_add_f32 v{p0}, v{p0}, v{p1}")
        a(f"v_sub_f32 v{p0}, v{p0}, v{F_D+r}")
        a(f"v_fmac_f32 v{F_D+r}, v{g}, v{p0}")
    for r in range(16):
        a(f"s_add_u32 s38, s37, {r*2048}")
        a(f"buffer_store_dword v{F_D+r}, v{T+7}, {sr(S_OUT,4)}, s38 offen")
    a.label("L_k4_exit")
    return kernel_block("final_kernel", a.text(), vgpr=112)
```

```python
from asmlib import *
from layout import *

def mfma32(a, d, A, B, C):
    c = C if isinstance(C, str) else vr(C, 16)
    a(f"v_mfma_f32_32x32x16_bf16 {vr(d,16)}, {vr(A,4)}, {vr(B,4)}, {c}")

def decode_wg(a, s_j, s_qb, tmp):
    a(f"s_and_b32 s{s_j}, s2, 7")
    a(f"s_lshl_b32 s{s_j}, s{s_j}, 2")
    a(f"s_bfe_u32 s{tmp}, s2, 0x20003")
    a(f"s_add_u32 s{s_j}, s{s_j}, s{tmp}")
    a(f"s_lshr_b32 s{s_qb}, s2, 5")

def cmul_acc(a, xr, xi, mr, mi, tr, ti):
    a(f"v_fmac_f32 v{xr}, v{mr}, v{tr}")
    a(f"v_fmac_f32 v{xi}, v{mr}, v{ti}")
    a(f"v_fma_f32 v{xr}, -v{mi}, v{ti}, v{xr}")
    a(f"v_fmac_f32 v{xi}, v{mi}, v{tr}")

def csquare(a, dr, di, sr_, si):
    a(f"v_mul_f32 v{dr}, v{sr_}, v{sr_}")
    a(f"v_mul_f32 v{di}, v{sr_}, v{si}")
    a(f"v_fma_f32 v{dr}, -v{si}, v{si}, v{dr}")
    a(f"v_add_f32 v{di}, v{di}, v{di}")

def ssm_params(a, srd_lre, srd_lim, srd_ldt, v_choff, R):
    t = R["t"]
    a(f"buffer_load_ushort v{t}, v{v_choff}, {sr(srd_lre,4)}, 0 offen")
    a(f"buffer_load_ushort v{t+1}, v{v_choff}, {sr(srd_lim,4)}, 0 offen")
    a(f"buffer_load_ushort v{t+2}, v{v_choff}, {sr(srd_ldt,4)}, 0 offen")
    a("s_waitcnt vmcnt(0)")
    a(f"v_lshlrev_b32 v{t}, 16, v{t}")
    a(f"v_lshlrev_b32 v{t+1}, 16, v{t+1}")
    a(f"v_lshlrev_b32 v{t+2}, 16, v{t+2}")
    a(f"v_mul_f32 v{t+2}, 0x3fb8aa3b, v{t+2}")
    a(f"v_exp_f32 v{t+2}, v{t+2}")
    a("s_nop 0")
    a(f"v_cvt_pk_bf16_f32 v{t+2}, v{t+2}, v{t+2}")
    a(f"v_lshlrev_b32 v{t+2}, 16, v{t+2}")
    a(f"v_mul_f32 v{t+3}, v{t+2}, v{t}")
    a(f"v_mul_f32 v{t+4}, v{t+2}, v{t+1}")
    a(f"v_mul_f32 v{t+3}, 0x3fb8aa3b, v{t+3}")
    a(f"v_exp_f32 v{t+3}, v{t+3}")
    a(f"v_mul_f32 v{t+4}, 0.15915494, v{t+4}")
    a(f"v_fract_f32 v{t+4}, v{t+4}")
    a(f"v_cos_f32 v{R['lr']}, v{t+4}")
    a(f"v_sin_f32 v{R['li']}, v{t+4}")
    a("s_nop 0")
    a(f"v_mul_f32 v{R['lr']}, v{R['lr']}, v{t+3}")
    a(f"v_mul_f32 v{R['li']}, v{R['li']}, v{t+3}")
    a(f"v_add_f32 v{t+3}, -1.0, v{R['lr']}")
    a(f"v_mul_f32 v{t+4}, v{t}, v{t}")
    a(f"v_fmac_f32 v{t+4}, v{t+1}, v{t+1}")
    a(f"v_rcp_f32 v{t+4}, v{t+4}")
    a(f"v_mul_f32 v{R['cr']}, v{t+3}, v{t}")
    a(f"v_fmac_f32 v{R['cr']}, v{R['li']}, v{t+1}")
    a(f"v_mul_f32 v{R['ci']}, v{R['li']}, v{t}")
    a(f"v_fma_f32 v{R['ci']}, -v{t+3}, v{t+1}, v{R['ci']}")
    a(f"v_mul_f32 v{R['cr']}, v{R['cr']}, v{t+4}")
    a(f"v_mul_f32 v{R['ci']}, v{R['ci']}, v{t+4}")
    csquare(a, t, t+1, R['lr'], R['li'])
    csquare(a, t+2, t+3, t, t+1)
    csquare(a, t, t+1, t+2, t+3)
    mu = R["mu"]
    csquare(a, mu, mu+1, t, t+1)
    csquare(a, mu+2, mu+3, mu, mu+1)
    csquare(a, mu+4, mu+5, mu+2, mu+3)
    csquare(a, mu+6, mu+7, mu+4, mu+5)
    if "nu" in R:
        nu = R["nu"]
        csquare(a, nu, nu+1, mu+6, mu+7)
        csquare(a, nu+2, nu+3, nu, nu+1)
        csquare(a, nu+4, nu+5, nu+2, nu+3)

def ks_scan(a, xr, xi, mul, shifts, tr, ti):
    for k, d in enumerate(shifts):
        a(f"v_mov_b32 v{tr}, 0")
        a(f"v_mov_b32 v{ti}, 0")
        a("s_nop 1")
        a(f"v_mov_b32_dpp v{tr}, v{xr} row_shr:{d} row_mask:0xf bank_mask:0xf")
        a(f"v_mov_b32_dpp v{ti}, v{xi} row_shr:{d} row_mask:0xf bank_mask:0xf")
        cmul_acc(a, xr, xi, mul + 2*k, mul + 2*k + 1, tr, ti)

def local_scan(a, ur, ui, lr, li, hr, hi, n=16, init_zero=True, emit=None, tmp=None):
    for t in range(n):
        if t == 0 and init_zero:
            a(f"v_mov_b32 v{hr}, v{ur}")
            a(f"v_mov_b32 v{hi}, v{ui}")
        else:
            a(f"v_fma_f32 v{tmp}, -v{li}, v{hi}, v{ur+t}")
            a(f"v_fma_f32 v{tmp+1}, v{li}, v{hr}, v{ui+t}")
            a(f"v_fma_f32 v{hr}, v{lr}, v{hr}, v{tmp}")
            a(f"v_fma_f32 v{hi}, v{lr}, v{hi}, v{tmp+1}")
        if emit:
            emit(t)
```

```python
from asmlib import *
def stamp(a, idx):
    a("s_memtime s[76:77]")
    a("s_memrealtime s[78:79]")
    a("s_waitcnt lgkmcnt(0)")
    a(f"s_mov_b32 s{80+2*idx}, s76")
    a(f"s_mov_b32 s{81+2*idx}, s78")

def dump_stamps(a, n, wave_sreg, srd, base=0x1800000):
    a("s_lshl_b32 s76, s2, 4")
    a(f"s_add_u32 s76, s76, s{wave_sreg}")
    a("s_lshl_b32 s76, s76, 7")
    a(f"s_add_u32 s76, s76, {base}")
    a(f"s_mov_b32 s{srd+2}, 0x2000000")
    a("s_mov_b64 exec, 1")
    a("v_mov_b32 v2, 0")
    for i in range(2*n):
        a(f"v_mov_b32 v3, s{80+i}")
        a(f"buffer_store_dword v3, v2, {sr(srd,4)}, s76 offen offset:{4*i}")

def report(r, nst, nw, names, base=0x1800000):
    import numpy as np
    st = r.ws_get(base, np.uint32, (256, 16, 32))[:, :nw, :2*nst].astype(np.int64)
    cyc = st[:, :, 0::2]; rt = st[:, :, 1::2]
    t0 = rt[:, :, 0].min()
    for i in range(nst):
        v = rt[:, :, i]; v = v[v > 0]
        s = "  %-14s t(us): min %.2f med %.2f max %.2f" % (names[i], (v.min() - t0) / 100., (np.median(v) - t0) / 100., (v.max() - t0) / 100.)
        if i > 0:
            ok = (rt[:, :, i] > 0) & (rt[:, :, i-1] > 0)
            dc = (cyc[:, :, i] - cyc[:, :, i-1])[ok]; dr = (rt[:, :, i] - rt[:, :, i-1])[ok]
            s += "   dcyc med %d max %d  clk %.2f" % (np.median(dc), dc.max(), dc.sum() / max(dr.sum(), 1) / 10)
        print(s)
```

```python
import sys
from build import make_file
import k_c1, k_c2, k_c3, k_c4
def make(path):
    return make_file(path, [("p1_kernel", 256, 768, k_c1.C1_LDS), ("attn_kernel", 256, 256, 32768), ("scan_kernel", 256, 256, 32768), ("final_kernel", 256, 768, 32768)],
              [k_c1.gen_k1(), k_c2.gen_k2(), k_c3.gen_k3(), k_c4.gen_k4()])
if __name__ == "__main__":
    make(sys.argv[1] if len(sys.argv) > 1 else "v1.s")
```

```python
import sys
from build import make_file
from asmlib import *
import k_c1, k_c2, k_c3, k_c4
def empty(name):
    return kernel_block(name, "  s_nop 0\n", vgpr=8, sgpr=16)
base_l = [("p1_kernel", 256, 768, k_c1.C1_LDS), ("attn_kernel", 256, 256, 32768), ("scan_kernel", 256, 256, 32768), ("final_kernel", 256, 768, 32768)]
base_k = lambda: [k_c1.gen_k1(), k_c2.gen_k2(), k_c3.gen_k3(), k_c4.gen_k4()]
make_file("xa.s", base_l, base_k())
make_file("xb.s", base_l + [("e1_kernel", 1, 64, 0)], base_k() + [empty("e1_kernel")])
make_file("xc.s", base_l + [("e1_kernel", 1, 64, 0)] * 4, base_k() + [empty("e1_kernel")])
make_file("xd.s", [("e1_kernel", 1, 64, 0)] + base_l, base_k() + [empty("e1_kernel")])
make_file("xe.s", [base_l[0], base_l[2], base_l[1], base_l[3]], base_k())
```

```python
from k_common import *
from prof import *
import k_c1
from k_c1 import decode_c, H_UR, H_UI, H_R, H_HR, H_HI, H_TR, H_TI, H_CH, H_SEG, H_MM, helper_params, load_ssm_srds, ks8

S_WS = 4
S_HP, S_RB, S_WV = 28, 29, 30
H_E = 96
H_OR, H_OI = 128, 136
H_L16 = 1
HT_PITCH = 320
HT_WAVE = 16 * HT_PITCH

def ssm_carry(a, s_rb, s_ws, tag):
    T = H_R["t"]
    a(f"v_lshlrev_b32 v{T}, 3, v{H_CH}")
    a(f"s_mov_b32 s40, {EF}")
    for c in range(16):
        a(f"buffer_load_dwordx2 {vr(H_E+2*c,2)}, v{T}, {sr(s_ws,4)}, s40 offen sc1")
        a("s_add_u32 s40, s40, 4096")

def ssm_horner(a, s_rb, tag, hr, hi):
    nu = H_R["mu"] + 6
    T = H_R["t"]
    a(f"v_mov_b32 v{hr}, 0"); a(f"v_mov_b32 v{hi}, 0")
    for c in range(15):
        a(f"s_cmp_le_u32 s{s_rb}, {c}")
        a(f"s_cbranch_scc1 L_horner_done_{tag}")
        a(f"v_fma_f32 v{T}, -v{nu+1}, v{hi}, v{H_E+2*c}")
        a(f"v_fma_f32 v{T+1}, v{nu+1}, v{hr}, v{H_E+2*c+1}")
        a(f"v_fma_f32 v{hr}, v{nu}, v{hr}, v{T}")
        a(f"v_fma_f32 v{hi}, v{nu}, v{hi}, v{T+1}")
    a.label(f"L_horner_done_{tag}")

def ssm_finish(a, s_rb, s_hp, s_hw, s_ws, lds_base, tag, store_flags="", have_ends=False):
    T = H_R["t"]
    CR, CI = H_MM + 2, H_MM + 3
    if not have_ends:
        local_scan(a, H_UR, H_UI, H_R["lr"], H_R["li"], H_HR, H_HI, tmp=T)
    a("s_waitcnt vmcnt(0)")
    ssm_horner(a, s_rb, tag, CR, CI)
    a(f"v_mov_b32 v{H_TR}, 0"); a(f"v_mov_b32 v{H_TI}, 0")
    a(f"v_cmp_eq_u32 vcc, 0, v{H_SEG}")
    a(f"v_mov_b32_dpp v{H_TR}, v{H_HR} row_shr:1 row_mask:0xf bank_mask:0xf")
    a(f"v_mov_b32_dpp v{H_TI}, v{H_HI} row_shr:1 row_mask:0xf bank_mask:0xf")
    a(f"v_cndmask_b32 v{H_HR}, v{H_TR}, v{CR}, vcc")
    a(f"v_cndmask_b32 v{H_HI}, v{H_TI}, v{CI}, vcc")
    a("s_nop 1")
    ks8(a, H_HR, H_HI)
    a(f"v_add_f32 v{CR}, v{H_R['cr']}, v{H_R['cr']}")
    a(f"v_add_f32 v{CI}, v{H_R['ci']}, v{H_R['ci']}")
    def emit(t):
        a(f"v_mul_f32 v{H_UR+t}, v{CR}, v{H_HR}")
        a(f"v_mul_f32 v{H_UI+t}, v{CR}, v{H_HI}")
        a(f"v_fma_f32 v{H_UR+t}, -v{CI}, v{H_HI}, v{H_UR+t}")
        a(f"v_fma_f32 v{H_UI+t}, -v{CI}, v{H_HR}, -v{H_UI+t}")
    local_scan(a, H_UR, H_UI, H_R["lr"], H_R["li"], H_HR, H_HI, init_zero=False, emit=emit, tmp=T)
    for i in range(8):
        a(f"v_cvt_pk_bf16_f32 v{H_OR+i}, v{H_UR+2*i}, v{H_UR+2*i+1}")
        a(f"v_cvt_pk_bf16_f32 v{H_OI+i}, v{H_UI+2*i}, v{H_UI+2*i+1}")
    a(f"v_lshrrev_b32 v{T}, 3, v0")
    a(f"v_mul_u32_u24 v{T}, {HT_PITCH}, v{T}")
    a(f"v_lshl_add_u32 v{T}, v{H_SEG}, 5, v{T}")
    a(f"s_mul_i32 s40, s{s_hw}, {HT_WAVE}")
    a(f"s_add_u32 s40, s40, {lds_base}")
    a(f"v_add_u32 v{T}, s40, v{T}")
    for c in range(2):
        a(f"ds_write_b128 v{T}, {vr(H_OR+4*c,4)} offset:{16*c}")
        a(f"ds_write_b128 v{T}, {vr(H_OI+4*c,4)} offset:{8*HT_PITCH + 16*c}")
    a(f"v_lshrrev_b32 v{T+1}, 5, v0")
    a(f"v_bfe_u32 v{T+2}, v0, 2, 2")
    a(f"v_lshl_add_u32 v{T+1}, v{T+1}, 3, v{T+2}")
    a(f"v_mul_u32_u24 v{T+1}, {HT_PITCH}, v{T+1}")
    a(f"v_and_b32 v{T+2}, 1, v0")
    a(f"v_lshlrev_b32 v{T+2}, 5, v{T+2}")
    a(f"v_bfe_u32 v{T+3}, v0, 4, 1")
    a(f"v_lshl_add_u32 v{T+2}, v{T+3}, 4, v{T+2}")
    a(f"v_bfe_u32 v{T+3}, v0, 1, 1")
    a(f"v_lshl_add_u32 v{T+2}, v{T+3}, 3, v{T+2}")
    a(f"v_add3_u32 v{T+1}, v{T+1}, v{T+2}, s40")
    a("s_waitcnt lgkmcnt(0)")
    for t in range(4):
        for e in range(2):
            a(f"ds_read_b64_tr_b16 {vr(H_E+4*t+2*e,2)}, v{T+1} offset:{4*e*HT_PITCH + t*64}")
    a(f"s_lshl_b32 s40, s{s_rb}, 8")
    a(f"s_lshl_b32 s41, s{s_hp}, 2")
    a("s_add_u32 s40, s40, s41")
    a(f"s_add_u32 s40, s40, s{s_hw}")
    a("s_lshl_b32 s40, s40, 10")
    a(f"s_add_u32 s40, s40, {HF}")
    a("s_waitcnt lgkmcnt(0)")
    for t in range(4):
        a(f"buffer_store_dwordx4 {vr(H_E+4*t,4)}, v{H_L16}, {sr(s_ws,4)}, s40 offen{store_flags}")
        a("s_add_u32 s40, s40, 65536")

def gen_k3(prof=False):
    a = Asm()
    a("s_cmp_ge_u32 s2, 256")
    a("s_cbranch_scc1 L_k3_exit")
    if prof: stamp(a, 0)
    load_ptr(a, S_WS, "ws")
    a("v_lshrrev_b32 v2, 6, v0")
    a("v_and_b32 v0, 63, v0")
    a(f"v_readfirstlane_b32 s{S_WV}, v2")
    decode_c(a, S_HP, S_RB, 36)
    a(f"v_lshlrev_b32 v{H_L16}, 4, v0")
    load_ssm_srds(a, 60)
    make_srd(a, S_WS, WS_USED)
    a("s_lshl_b32 s52, s2, 2")
    a(f"s_add_u32 s52, s52, s{S_WV}")
    a("s_lshl_b32 s52, s52, 13")
    a(f"s_add_u32 s52, s52, {UF}")
    for c in range(8):
        a(f"s_add_u32 s53, s52, {c*1024}")
        a(f"buffer_load_dwordx4 {vr(H_UR+4*c,4)}, v{H_L16}, {sr(S_WS,4)}, s53 offen")
    helper_params(a, S_WV, S_HP, 60)
    ssm_carry(a, S_RB, S_WS, "k3")
    ssm_finish(a, S_RB, S_HP, S_WV, S_WS, 0, "k3")
    if prof:
        a("s_waitcnt vmcnt(0)")
        stamp(a, 1)
        dump_stamps(a, 2, S_WV, S_WS)
    a.label("L_k3_exit")
    return kernel_block("scan_kernel", a.text(), vgpr=144)
```

```python
from k_common import *
from prof import *
from k_c1 import decode_c

S_WS, S_X, S_OUT, S_DS = 4, 8, 12, 16
S_HP, S_RB, S_WV = 28, 29, 30
S_T, S_CT = 31, 32
S_A, S_B = 33, 34
F_L16 = 1
F_D = 8
F_BUF = 24
F_T = 100

def gemm_stream(a, nsteps, NB, tag):
    def issue(k):
        b = F_BUF + 8 * (k % NB)
        a(f"buffer_load_dwordx4 {vr(b,4)}, v{F_L16}, {sr(S_WS,4)}, s{S_A} offen sc1")
        a(f"buffer_load_dwordx4 {vr(b+4,4)}, v{F_L16}, {sr(S_WS,4)}, s{S_B} offen sc1")
        a(f"s_add_u32 s{S_A}, s{S_A}, 1024")
        a(f"s_add_u32 s{S_B}, s{S_B}, 1024")
    for k in range(min(NB, nsteps)):
        issue(k)
    for k in range(nsteps):
        left = min(NB - 1, nsteps - 1 - k)
        a(f"s_waitcnt vmcnt({2*left})")
        b = F_BUF + 8 * (k % NB)
        mfma32(a, F_D, b, b + 4, F_D)
        if k + NB < nsteps:
            issue(k + NB)

def gen_k4(prof=False):
    a = Asm()
    a("s_cmp_ge_u32 s2, 256")
    a("s_cbranch_scc1 L_k4_exit")
    if prof: stamp(a, 0)
    load_ptr(a, S_WS, "ws"); load_ptr(a, S_X, "x"); load_ptr(a, S_OUT, "out"); load_ptr(a, S_DS, "dskip")
    a("v_lshrrev_b32 v2, 6, v0")
    a("v_and_b32 v0, 63, v0")
    a(f"v_readfirstlane_b32 s{S_WV}, v2")
    decode_c(a, S_HP, S_RB, 36)
    a(f"v_lshlrev_b32 v{F_L16}, 4, v0")
    a(f"s_and_b32 s36, s{S_WV}, 1")
    a(f"s_and_b32 s37, s{S_HP}, 1")
    a("s_lshl_b32 s37, s37, 1")
    a(f"s_lshl_b32 s{S_T}, s{S_RB}, 2")
    a(f"s_add_u32 s{S_T}, s{S_T}, s37")
    a(f"s_add_u32 s{S_T}, s{S_T}, s36")
    a(f"s_bfe_u32 s36, s{S_WV}, 0x10001")
    a(f"s_lshr_b32 s{S_CT}, s{S_HP}, 1")
    a(f"s_lshl_b32 s{S_CT}, s{S_CT}, 1")
    a(f"s_add_u32 s{S_CT}, s{S_CT}, s36")
    for i in range(16):
        a(f"v_mov_b32 v{F_D+i}, 0")
    a("s_waitcnt lgkmcnt(0)")
    make_srd(a, S_WS, WS_USED); make_srd(a, S_X, 2 << 20); make_srd(a, S_OUT, 4 << 20); make_srd(a, S_DS, 1024)
    a(f"s_cmp_ge_u32 s{S_WV}, 8")
    a("s_cbranch_scc1 L_k4_y")
    a(f"s_lshr_b32 s36, s{S_WV}, 2")
    a("s_lshl_b32 s36, s36, 4")
    a(f"s_lshl_b32 s{S_A}, s{S_T}, 5")
    a(f"s_add_u32 s{S_A}, s{S_A}, s36")
    a(f"s_lshl_b32 s{S_A}, s{S_A}, 10")
    a(f"s_add_u32 s{S_A}, s{S_A}, {OF}")
    a(f"s_lshl_b32 s{S_B}, s{S_CT}, 5")
    a(f"s_add_u32 s{S_B}, s{S_B}, s36")
    a(f"s_lshl_b32 s{S_B}, s{S_B}, 10")
    a(f"s_add_u32 s{S_B}, s{S_B}, {WF}")
    gemm_stream(a, 16, 8, "a")
    if prof: stamp(a, 1)
    a("s_nop 15")
    a(f"s_lshl_b32 s36, s{S_WV}, 12")
    a(f"v_add_u32 v{F_T}, s36, v{F_L16}")
    for c in range(4):
        a(f"ds_write_b128 v{F_T}, {vr(F_D+4*c,4)} offset:{c*1024}")
    a("s_waitcnt lgkmcnt(0)")
    a("s_barrier")
    a("s_branch L_k4_end")
    a.label("L_k4_y")
    a(f"s_lshl_b32 s{S_A}, s{S_T}, 16")
    a(f"s_add_u32 s{S_A}, s{S_A}, {HF}")
    a(f"s_lshl_b32 s{S_B}, s{S_CT}, 16")
    a(f"s_add_u32 s{S_B}, s{S_B}, {CF}")
    gemm_stream(a, 64, 8, "y")
    if prof: stamp(a, 1)
    T = F_T
    a(f"v_and_b32 v{T}, 31, v0")
    a(f"s_lshl_b32 s36, s{S_CT}, 5")
    a(f"v_add_u32 v{T}, s36, v{T}")
    a(f"v_lshlrev_b32 v{T+1}, 1, v{T}")
    a(f"buffer_load_ushort v{T+2}, v{T+1}, {sr(S_DS,4)}, 0 offen")
    a(f"v_lshrrev_b32 v{T+3}, 5, v0")
    a(f"v_lshl_add_u32 v{T+4}, v{T+3}, 14, v{T+1}")
    a(f"s_lshl_b32 s37, s{S_T}, 15")
    for r in range(16):
        a(f"s_add_u32 s38, s37, {r*1024}")
        a(f"buffer_load_ushort v{F_BUF+r}, v{T+4}, {sr(S_X,4)}, s38 offen")
    a(f"v_lshlrev_b32 v{T+5}, 6, v{T+3}")
    a(f"s_lshl_b32 s38, s{S_T}, 7")
    a(f"s_add_u32 s38, s38, {GF}")
    for c in range(4):
        a(f"buffer_load_dwordx4 {vr(F_BUF+16+4*c,4)}, v{T+5}, {sr(S_WS,4)}, s38 offen offset:{16*c} sc1")
    a("s_barrier")
    a(f"s_sub_u32 s36, s{S_WV}, 8")
    a("s_lshl_b32 s36, s36, 12")
    a(f"v_add_u32 v{T+6}, s36, v{F_L16}")
    for c in range(4):
        a(f"ds_read_b128 {vr(F_BUF+32+4*c,4)}, v{T+6} offset:{c*1024}")
        a(f"ds_read_b128 {vr(F_BUF+48+4*c,4)}, v{T+6} offset:{16384 + c*1024}")
    a("s_waitcnt vmcnt(0) lgkmcnt(0)")
    a(f"v_lshlrev_b32 v{T+2}, 16, v{T+2}")
    a(f"v_lshlrev_b32 v{T+7}, 15, v{T+3}")
    a(f"v_lshl_add_u32 v{T+7}, v{T}, 2, v{T+7}")
    a(f"s_lshl_b32 s37, s{S_T}, 16")
    for r in range(16):
        xr = F_BUF + r; g = F_BUF + 16 + r; p0 = F_BUF + 32 + r; p1 = F_BUF + 48 + r
        a(f"v_lshlrev_b32 v{xr}, 16, v{xr}")
        a(f"v_fmac_f32 v{F_D+r}, v{xr}, v{T+2}")
        a(f"v_add_f32 v{p0}, v{p0}, v{p1}")
        a(f"v_sub_f32 v{p0}, v{p0}, v{F_D+r}")
        a(f"v_fmac_f32 v{F_D+r}, v{g}, v{p0}")
    for r in range(16):
        a(f"s_add_u32 s38, s37, {r*2048}")
        a(f"buffer_store_dword v{F_D+r}, v{T+7}, {sr(S_OUT,4)}, s38 offen")
    a.label("L_k4_end")
    if prof:
        a("s_waitcnt vmcnt(0)")
        stamp(a, 2)
        dump_stamps(a, 3, S_WV, S_WS)
    a.label("L_k4_exit")
    return kernel_block("final_kernel", a.text(), vgpr=112)
```

```python
from asmlib import *
def stamp(a, idx):
    a("s_memtime s[76:77]")
    a("s_memrealtime s[78:79]")
    a("s_waitcnt lgkmcnt(0)")
    a(f"s_mov_b32 s{80+2*idx}, s76")
    a(f"s_mov_b32 s{81+2*idx}, s78")

BASE = 0x1800000
def dump_stamps(a, n, wave_sreg, srd, base=None):
    if base is None: base = BASE
    a("s_lshl_b32 s76, s2, 4")
    a(f"s_add_u32 s76, s76, s{wave_sreg}")
    a("s_lshl_b32 s76, s76, 7")
    a(f"s_add_u32 s76, s76, {base}")
    a(f"s_mov_b32 s{srd+2}, 0x2000000")
    a("s_mov_b64 exec, 1")
    a("v_mov_b32 v2, 0")
    for i in range(2*n):
        a(f"v_mov_b32 v3, s{80+i}")
        a(f"buffer_store_dword v3, v2, {sr(srd,4)}, s76 offen offset:{4*i}")

def report(r, nst, nw, names, base=0x1800000, t0=None):
    import numpy as np
    st = r.ws_get(base, np.uint32, (256, 16, 32))[:, :nw, :2*nst].astype(np.int64)
    cyc = st[:, :, 0::2]; rt = st[:, :, 1::2]
    if t0 is None: t0 = rt[:, :, 0].min()
    for i in range(nst):
        v = rt[:, :, i]; v = v[v > 0]
        s = "  %-14s t(us): min %.2f med %.2f max %.2f" % (names[i], (v.min() - t0) / 100., (np.median(v) - t0) / 100., (v.max() - t0) / 100.)
        if i > 0:
            ok = (rt[:, :, i] > 0) & (rt[:, :, i-1] > 0)
            dc = (cyc[:, :, i] - cyc[:, :, i-1])[ok]; dr = (rt[:, :, i] - rt[:, :, i-1])[ok]
            s += "   dcyc med %d max %d  clk %.2f" % (np.median(dc), dc.max(), dc.sum() / max(dr.sum(), 1) / 10)
        print(s)
    return t0
```

```python
from build import make_file
from asmlib import *
import k_c1, k_c2, k_c3, k_c4
base_l = [("p1_kernel", 256, 768, k_c1.C1_LDS), ("attn_kernel", 256, 256, 32768), ("scan_kernel", 256, 256, 32768), ("final_kernel", 256, 768, 32768)]
base_k = lambda: [k_c1.gen_k1(), k_c2.gen_k2(), k_c3.gen_k3(), k_c4.gen_k4()]
make_file("ya.s", base_l, base_k())
make_file("yb.s", base_l * 2, base_k())
make_file("yc.s", base_l + [base_l[3]], base_k())
make_file("yd.s", [base_l[0]] + base_l, base_k())
make_file("ye.s", base_l[:2] + [base_l[1]] + base_l[2:], base_k())
make_file("yf.s", base_l[:3] + [base_l[2]] + base_l[3:], base_k())
```

```python
from build import make_file
from asmlib import *
import k_c1, k_c2, k_c3, k_c4
from layout import *
def pf(name, touch_ws=False, inputs=True):
    a = Asm()
    a("s_cmp_ge_u32 s2, 256")
    a(f"s_cbranch_scc1 L_{name}_exit")
    bufs = [("x", 2 << 20), ("wqkv", 512*3072), ("bre", 512*1024), ("bim", 512*1024), ("cre", 512*1024), ("cim", 512*1024), ("wo", 512*1024)]
    for i, (n, sz) in enumerate(bufs):
        load_ptr(a, 8 + 4*i, n)
    load_ptr(a, 4, "ws"); load_ptr(a, 40, "out")
    a("s_lshl_b32 s3, s2, 8")
    a("v_add_u32 v1, s3, v0")
    a("v_lshlrev_b32 v1, 4, v1")
    a("s_waitcnt lgkmcnt(0)")
    make_srd(a, 4, 0x10000000); make_srd(a, 40, 4 << 20)
    k = 0
    if inputs:
        for i, (n, sz) in enumerate(bufs):
            make_srd(a, 8 + 4*i, sz)
            for o in range(0, sz, 1 << 20):
                a(f"s_mov_b32 s50, {o}")
                a(f"buffer_load_dwordx4 v[{4+4*(k%16)}:{7+4*(k%16)}], v1, s[{8+4*i}:{11+4*i}], s50 offen"); k += 1
    if touch_ws:
        a("v_lshlrev_b32 v2, 16, v0")
        a("s_mov_b32 s50, 0")
        a("buffer_load_dword v70, v2, s[4:7], s50 offen")
        a("s_mov_b32 s50, 0x1000000")
        a("buffer_load_dword v71, v2, s[4:7], s50 offen")
        a("v_lshlrev_b32 v2, 14, v0")
        a("buffer_load_dword v72, v2, s[40:43], 0 offen")
    a("s_waitcnt vmcnt(0)")
    a.label(f"L_{name}_exit")
    return kernel_block(name, a.text(), vgpr=80)
base_l = [("p1_kernel", 256, 768, k_c1.C1_LDS), ("attn_kernel", 256, 256, 32768), ("scan_kernel", 256, 256, 32768), ("final_kernel", 256, 768, 32768)]
base_k = lambda: [k_c1.gen_k1(), k_c2.gen_k2(), k_c3.gen_k3(), k_c4.gen_k4()]
make_file("pa.s", base_l, base_k())
make_file("pb.s", [("pf_kernel", 256, 256, 0)] + base_l, base_k() + [pf("pf_kernel", False, True)])
make_file("pc.s", [("pf_kernel", 256, 256, 0)] + base_l, base_k() + [pf("pf_kernel", True, True)])
make_file("pd.s", [("pf_kernel", 256, 256, 0)] + base_l, base_k() + [pf("pf_kernel", True, False)])
make_file("pe.s", [("pf_kernel", 256, 256, 0)] + base_l, base_k() + [pf("pf_kernel", False, False)])
```

```python
from k_common import *
from prof import *
from k_c1 import decode_c

A_L16, A_VO = 1, 2
A_Q = 4
A_O = 20
A_S0, A_S1 = 84, 100
A_P = 116
A_K = 124
A_V = 132
A_T = 148
A_M = 160
A_NV = 164
S_WS = 4
S_HP, S_RB, S_WV, S_HEAD, S_KH = 8, 9, 10, 11, 12
S_HB = 14
S_CUR, S_NXT, S_CH = 15, 16, 17
S_MASK = 22
S_IT = 24
S_X0 = 26
SC1 = " sc1"
NOLOAD = False

def O(qt): return A_O + 16 * qt
def Q(qt): return A_Q + 4 * qt

def load_k(a, buf, so, off):
    if NOLOAD: return
    a(f"buffer_load_dwordx4 {vr(A_K+4*buf,4)}, v{A_L16}, {sr(S_WS,4)}, s{so} offen offset:{off}{SC1}")
def load_v(a, buf, so, off):
    if NOLOAD: return
    a(f"s_mov_b64 exec, s[{S_MASK}:{S_MASK+1}]")
    a(f"buffer_load_dwordx4 {vr(A_V+8*buf,4)}, v{A_VO}, {sr(S_WS,4)}, s{so} offen offset:{off+1024}{SC1}")
    a(f"buffer_load_dwordx4 {vr(A_V+8*buf+4,4)}, v{A_VO}, {sr(S_WS,4)}, s{so} offen offset:{off+1536}{SC1}")
    a("s_mov_b64 exec, -1")

def next_pair(a):
    a(f"s_mov_b32 s{S_CUR}, s{S_NXT}")
    a(f"s_add_u32 s{S_CH}, s{S_CH}, 1")
    a(f"s_and_b32 s{S_CH}, s{S_CH}, 15")
    a(f"s_lshl_b32 s{S_NXT}, s{S_CH}, 13")
    a(f"s_add_u32 s{S_NXT}, s{S_NXT}, s{S_HB}")

def unit(a, u, hooks):
    n, qt = u >> 2, u & 3
    Sc, Sn = (A_S0, A_S1) if u % 2 == 0 else (A_S1, A_S0)
    pu = (u - 1) % 8; pn, pqt = pu >> 2, pu & 3
    nu = (u + 1) % 8; nn, nqt = nu >> 2, nu & 3
    ex = lambda i: a(f"v_exp_f32 v{Sc+i}, v{Sc+i}")
    cv = lambda i: a(f"v_cvt_pk_bf16_f32 v{A_P+i}, v{Sc+2*i}, v{Sc+2*i+1}")
    h = lambda name: hooks.get(name, lambda: None)()
    pcv = lambda i: a(f"v_cvt_pk_bf16_f32 v{A_P+i}, v{Sn+2*i}, v{Sn+2*i+1}")
    h("pre")
    ex(0); pcv(6); ex(1); pcv(7); ex(2); ex(3)
    mfma32(a, O(pqt), A_V + 8*pn + 4, A_P + 4, O(pqt))
    h("after_pv1")
    cv(0); ex(4); ex(5); cv(1)
    h("before_qk")
    mfma32(a, Sn, A_K + 4*nn, Q(nqt), "0")
    h("after_qk")
    ex(6); ex(7); cv(2); ex(8); ex(9); cv(3)
    ex(10); ex(11)
    mfma32(a, O(qt), A_V + 8*n, A_P, O(qt))
    cv(4); ex(12); ex(13); cv(5); ex(14); ex(15)

def init_v_consts(a):
    a(f"v_and_b32 v{A_T}, 27, v0")
    a(f"v_cmp_eq_u32 vcc, 16, v{A_T}")
    a(f"v_mov_b32 v{A_T}, 0x3f803f80")
    a("s_nop 0")
    a(f"v_cndmask_b32 v{A_T}, 0, v{A_T}, vcc")
    for i in range(16):
        a(f"v_mov_b32 v{A_V+i}, v{A_T}")

def attn_prologue_loads(a):
    load_k(a, 0, S_NXT, 0)
    load_v(a, 0, S_NXT, 0)
    load_k(a, 1, S_NXT, 2048)

def attn_loop(a, tag):
    for i in range(64):
        a(f"v_mov_b32 v{A_O+i}, 0")
    for i in range(4, 6):
        a(f"v_mov_b32 v{A_P+i}, 0")
    for i in range(12, 16):
        a(f"v_mov_b32 v{A_S1+i}, 0")
    a("s_waitcnt vmcnt(3)")
    mfma32(a, A_S0, A_K, Q(0), "0")
    a("s_nop 7")
    a(f"s_mov_b32 s{S_IT}, 0")
    a.label(f"L_at_loop_{tag}")
    for u in range(8):
        hooks = {}
        if u == 0:
            def pre0():
                next_pair(a)
                a("s_waitcnt vmcnt(1)")
            hooks["pre"] = pre0
            hooks["after_pv1"] = lambda: load_v(a, 1, S_CUR, 2048)
        if u == 2:
            hooks["after_qk"] = lambda: load_k(a, 0, S_NXT, 0)
        if u == 3:
            hooks["before_qk"] = lambda: a("s_waitcnt vmcnt(3)")
        if u == 4:
            hooks["pre"] = lambda: a("s_waitcnt vmcnt(1)")
            hooks["after_pv1"] = lambda: load_v(a, 0, S_NXT, 0)
        if u == 6:
            hooks["after_qk"] = lambda: load_k(a, 1, S_NXT, 2048)
        if u == 7:
            hooks["before_qk"] = lambda: a("s_waitcnt vmcnt(3)")
        unit(a, u, hooks)
    a(f"s_add_u32 s{S_IT}, s{S_IT}, 1")
    a(f"s_cmp_lt_u32 s{S_IT}, 16")
    a(f"s_cbranch_scc1 L_at_loop_{tag}")
    a("s_nop 0")
    for i in (6, 7):
        a(f"v_cvt_pk_bf16_f32 v{A_P+i}, v{A_S1+2*i}, v{A_S1+2*i+1}")
    a("s_nop 1")
    mfma32(a, O(3), A_V + 8 + 4, A_P + 4, O(3))
    a("s_waitcnt vmcnt(0)")
    a("s_nop 15")

def attn_combine(a, lds_base):
    T = A_T
    a(f"s_lshl_b32 s{S_X0+0}, s{S_WV}, 0")
    a(f"s_mul_i32 s{S_X0+0}, s{S_X0+0}, 6144")
    a(f"s_add_u32 s{S_X0+0}, s{S_X0+0}, {lds_base}")
    a(f"v_add_u32 v{T}, s{S_X0+0}, v{A_L16}")
    a(f"s_cmp_eq_u32 s{S_KH}, 0")
    a("s_cbranch_scc1 L_cmb_k0")
    for t in range(2):
        for c in range(3):
            a(f"ds_write_b128 v{T}, {vr(O(t)+4*c,4)} offset:{t*3072 + c*1024}")
    a("s_waitcnt lgkmcnt(0)")
    for i in range(12):
        a(f"v_mov_b32 v{O(0)+i}, v{O(2)+i}")
        a(f"v_mov_b32 v{O(1)+i}, v{O(3)+i}")
    a("s_branch L_cmb_x")
    a.label("L_cmb_k0")
    for t in range(2):
        for c in range(3):
            a(f"ds_write_b128 v{T}, {vr(O(2+t)+4*c,4)} offset:{t*3072 + c*1024}")
    a.label("L_cmb_x")
    a("s_waitcnt lgkmcnt(0)")
    a("s_barrier")
    a(f"s_xor_b32 s{S_X0+0}, s{S_WV}, 1")
    a(f"s_mul_i32 s{S_X0+0}, s{S_X0+0}, 6144")
    a(f"s_add_u32 s{S_X0+0}, s{S_X0+0}, {lds_base}")
    a(f"v_add_u32 v{T}, s{S_X0+0}, v{A_L16}")
    for t in range(2):
        for c in range(3):
            a(f"ds_read_b128 {vr(O(2+t)+4*c,4)}, v{T} offset:{t*3072 + c*1024}")
    a("s_waitcnt lgkmcnt(0)")
    for t in range(2):
        for i in range(9):
            a(f"v_add_f32 v{O(t)+i}, v{O(t)+i}, v{O(2+t)+i}")

def attn_check_fallback(a, t, tag):
    T = A_T; Ob = O(t)
    a(f"v_max3_f32 v{T}, |v{Ob}|, |v{Ob+1}|, |v{Ob+2}|")
    a(f"v_max3_f32 v{T}, v{T}, |v{Ob+3}|, |v{Ob+4}|")
    a(f"v_max3_f32 v{T}, v{T}, |v{Ob+5}|, |v{Ob+6}|")
    a(f"v_max_f32 v{T}, v{T}, |v{Ob+7}|")
    a(f"s_mov_b32 s{S_X0+0}, 0x7f000000")
    a(f"s_mov_b32 s{S_X0+1}, 0x21800000")
    a(f"s_mov_b32 s{S_X0+2}, 0x5d800000")
    a(f"v_cmp_gt_f32 s[{S_X0+4}:{S_X0+5}], s{S_X0+0}, v{T}")
    a(f"v_cmp_le_f32 s[{S_X0+6}:{S_X0+7}], s{S_X0+1}, v{Ob+8}")
    a(f"v_cmp_ge_f32 vcc, s{S_X0+2}, v{Ob+8}")
    a(f"s_and_b64 s[{S_X0+4}:{S_X0+5}], s[{S_X0+4}:{S_X0+5}], s[{S_X0+6}:{S_X0+7}]")
    a(f"s_and_b64 s[{S_X0+4}:{S_X0+5}], s[{S_X0+4}:{S_X0+5}], vcc")
    a(f"s_cmp_eq_u64 s[{S_X0+4}:{S_X0+5}], exec")
    a(f"s_cbranch_scc1 L_at_ok_{tag}")
    M = A_M; S = A_S0
    a(f"s_cmp_eq_u32 s{S_KH}, 0")
    a(f"s_cbranch_scc1 L_at_sq0_{tag}")
    for i in range(4): a(f"v_mov_b32 v{A_K+4+i}, v{Q(2+t)+i}")
    a(f"s_branch L_at_sq1_{tag}")
    a.label(f"L_at_sq0_{tag}")
    for i in range(4): a(f"v_mov_b32 v{A_K+4+i}, v{Q(t)+i}")
    a.label(f"L_at_sq1_{tag}")
    a(f"v_mov_b32 v{M}, 0xff800000")
    for i in range(16):
        a(f"v_mov_b32 v{Ob+i}, 0")
    a(f"s_lshl_b32 s{S_X0+3}, s{S_HEAD}, 17")
    a(f"s_add_u32 s{S_X0+3}, s{S_X0+3}, {KV}")
    a(f"s_mov_b32 s{S_X0+8}, 0")
    a.label(f"L_at_slow_{tag}")
    load_k(a, 0, S_X0+3, 0)
    load_v(a, 0, S_X0+3, 0)
    a("s_waitcnt vmcnt(0)")
    mfma32(a, S, A_K, A_K + 4, "0")
    a("s_nop 15")
    a("s_nop 3")
    a(f"v_max3_f32 v{T}, v{S}, v{S+1}, v{S+2}")
    for i in range(3, 15, 2):
        a(f"v_max3_f32 v{T}, v{T}, v{S+i}, v{S+i+1}")
    a(f"v_max_f32 v{T}, v{T}, v{S+15}")
    a(f"v_mov_b32 v{T+1}, v{T}")
    a("s_nop 1")
    a(f"v_permlane32_swap_b32 v{T}, v{T+1}")
    a("s_nop 1")
    a(f"v_max3_f32 v{T}, v{T}, v{T+1}, v{M}")
    a(f"v_sub_f32 v{T+1}, v{M}, v{T}")
    a(f"v_exp_f32 v{T+1}, v{T+1}")
    a(f"v_mov_b32 v{M}, v{T}")
    for i in range(16):
        a(f"v_sub_f32 v{S+i}, v{S+i}, v{T}")
    for i in range(16):
        a(f"v_exp_f32 v{S+i}, v{S+i}")
    for i in range(16):
        a(f"v_mul_f32 v{Ob+i}, v{Ob+i}, v{T+1}")
    for i in range(8):
        a(f"v_cvt_pk_bf16_f32 v{A_P+i}, v{S+2*i}, v{S+2*i+1}")
    a("s_nop 1")
    mfma32(a, Ob, A_V, A_P, Ob)
    mfma32(a, Ob, A_V + 4, A_P + 4, Ob)
    a(f"s_add_u32 s{S_X0+3}, s{S_X0+3}, 2048")
    a("s_nop 15")
    a("s_nop 3")
    a(f"s_add_u32 s{S_X0+8}, s{S_X0+8}, 1")
    a(f"s_cmp_lt_u32 s{S_X0+8}, 64")
    a(f"s_cbranch_scc1 L_at_slow_{tag}")
    a.label(f"L_at_ok_{tag}")

def attn_normalize(a, t, dst):
    T = A_T; Ob = O(t)
    a(f"v_rcp_f32 v{T}, v{Ob+8}")
    a("s_nop 0")
    for i in range(8):
        a(f"v_mul_f32 v{Ob+i}, v{Ob+i}, v{T}")
    for i in range(4):
        a(f"v_cvt_pk_bf16_f32 v{dst+i}, v{Ob+2*i}, v{Ob+2*i+1}")

def gen_k2(force_slow=False, prof=False):
    a = Asm()
    a("s_cmp_ge_u32 s2, 256")
    a("s_cbranch_scc1 L_k2_exit")
    if prof: stamp(a, 0)
    load_ptr(a, S_WS, "ws")
    a("v_lshrrev_b32 v2, 6, v0")
    a("v_and_b32 v0, 63, v0")
    a(f"v_readfirstlane_b32 s{S_WV}, v2")
    decode_c(a, S_HP, S_RB, 26)
    a(f"v_lshlrev_b32 v{A_L16}, 4, v0")
    a(f"s_and_b32 s{S_KH}, s{S_WV}, 1")
    a(f"s_bfe_u32 s26, s{S_WV}, 0x10001")
    a(f"s_lshl_b32 s{S_HEAD}, s{S_HP}, 1")
    a(f"s_add_u32 s{S_HEAD}, s{S_HEAD}, s26")
    a(f"s_mov_b32 s{S_MASK}, 0x0000ffff"); a(f"s_mov_b32 s{S_MASK+1}, 0x0000ffff")
    a(f"v_and_b32 v{A_VO}, 15, v0")
    a(f"v_lshlrev_b32 v{A_VO}, 4, v{A_VO}")
    a(f"v_lshrrev_b32 v{A_T}, 5, v0")
    a(f"v_lshl_add_u32 v{A_VO}, v{A_T}, 8, v{A_VO}")
    init_v_consts(a)
    a(f"s_lshl_b32 s{S_HB}, s{S_HEAD}, 6")
    a(f"s_lshl_b32 s26, s{S_KH}, 1")
    a(f"s_add_u32 s{S_HB}, s{S_HB}, s26")
    a(f"s_lshl_b32 s{S_HB}, s{S_HB}, 11")
    a(f"s_add_u32 s{S_HB}, s{S_HB}, {KV}")
    a(f"s_mov_b32 s{S_CH}, s{S_RB}")
    a(f"s_lshl_b32 s{S_NXT}, s{S_CH}, 13")
    a(f"s_add_u32 s{S_NXT}, s{S_NXT}, s{S_HB}")
    a("s_waitcnt lgkmcnt(0)")
    make_srd(a, S_WS, WS_USED)
    a(f"s_lshl_b32 s26, s{S_HEAD}, 6")
    a(f"s_lshl_b32 s27, s{S_RB}, 2")
    a("s_add_u32 s26, s26, s27")
    a("s_lshl_b32 s26, s26, 10")
    a(f"s_add_u32 s26, s26, {QF}")
    for qt in range(4):
        a(f"buffer_load_dwordx4 {vr(Q(qt),4)}, v{A_L16}, {sr(S_WS,4)}, s26 offen offset:{qt*1024}")
    attn_prologue_loads(a)
    if prof: stamp(a, 1)
    attn_loop(a, "k2")
    if prof: stamp(a, 2)
    attn_combine(a, 0)
    for t in range(2):
        if force_slow:
            a(f"v_mov_b32 v{O(t)+8}, 0")
        attn_check_fallback(a, t, f"k2_{t}")
        attn_normalize(a, t, A_S1 + 4*t)
    a(f"s_lshl_b32 s26, s{S_RB}, 1")
    a(f"s_add_u32 s26, s26, s{S_KH}")
    a("s_lshl_b32 s26, s26, 6")
    a(f"s_add_u32 s26, s26, s{S_HEAD}")
    a("s_lshl_b32 s26, s26, 10")
    a(f"s_add_u32 s26, s26, {OF}")
    a(f"buffer_store_dwordx4 {vr(A_S1,4)}, v{A_L16}, {sr(S_WS,4)}, s26 offen")
    a("s_add_u32 s26, s26, 32768")
    a(f"buffer_store_dwordx4 {vr(A_S1+4,4)}, v{A_L16}, {sr(S_WS,4)}, s26 offen")
    if prof:
        a("s_waitcnt vmcnt(0)")
        stamp(a, 3)
        dump_stamps(a, 4, S_WV, S_WS)
    a.label("L_k2_exit")
    return kernel_block("attn_kernel", a.text(), vgpr=A_NV)
```

```python
from k_common import *
from prof import *
import k_c1, k_c2, k_c3

NAME = "gated_mix__mha_block__ssm_conv_s5__prompt_kernel"
LX, LW = 0, 65536
LQ = 114688
LU = 0
LH = 40960
LO = 65536
LA = 98304
F_LDS = 122880
QSCALE = 0x3eb8aa3b
NKEY = 0x5bd1e995
S_WS, S_X, S_W, S_BRE, S_BIM = 4, 8, 12, 16, 20
S_HP, S_RB, S_WV, S_T = 28, 29, 30, 31
S_SOX, S_SOW, S_SOB, S_MX, S_MW, S_MB = 32, 33, 34, 35, 38, 39
S_TMP = 36
S_LRE, S_LIM, S_LDT, S_GT = 40, 44, 48, 52
S_CRE, S_CIM, S_WO, S_OUT, S_DS = 56, 60, 64, 68, 72
S_N0, S_N1 = 24, 25
S_SPIN = 26
S_P0 = 96
SPIN_MAX = 400000

k_c1.S_TMP = S_TMP; k_c1.LU = LU; k_c1.S_T = S_T

def setup_common(a):
    load_ptr(a, S_WS, "ws"); load_ptr(a, S_X, "x"); load_ptr(a, S_W, "wqkv")
    load_ptr(a, S_BRE, "bre"); load_ptr(a, S_BIM, "bim")
    a("v_lshrrev_b32 v2, 6, v0")
    a("v_and_b32 v0, 63, v0")
    a(f"v_readfirstlane_b32 s{S_WV}, v2")
    k_c1.decode_c(a, S_HP, S_RB, S_TMP)
    a("v_lshlrev_b32 v1, 4, v0")
    a(f"s_and_b32 s{S_T}, s{S_WV}, 3")

def srds_main(a):
    a("s_waitcnt lgkmcnt(0)")
    make_srd(a, S_WS, WS_USED); make_srd(a, S_X, 2 << 20); make_srd(a, S_W, 512*3072)
    make_srd(a, S_BRE, 512*1024); make_srd(a, S_BIM, 512*1024)

def nonce_load(a, v):
    a(f"v_mov_b32 v{v}, 0")
    a(f"s_mov_b32 s{S_TMP}, {NONCE}")
    a(f"buffer_load_dword v{v}, v{v}, {sr(S_WS,4)}, s{S_TMP} offen sc1")
def nonce_take(a, v):
    a(f"v_readfirstlane_b32 s{S_N0}, v{v}")
    a("s_nop 3")
    a(f"s_add_u32 s{S_N0}, s{S_N0}, 1")
    a(f"s_xor_b32 s{S_N1}, s{S_N0}, {hex(NKEY)}")

def flag_set(a, s_off, T):
    a("s_mov_b64 exec, 1")
    a(f"v_mov_b32 v{T}, s{S_N0}")
    a(f"v_mov_b32 v{T+1}, s{S_N1}")
    a(f"v_mov_b32 v{T+2}, 0")
    a(f"buffer_store_dwordx2 v[{T}:{T+1}], v{T+2}, {sr(S_WS,4)}, s{s_off} offen sc1")
    a("s_mov_b64 exec, -1")

def poll(a, s_off, v_off, T, mask_lo, mask_hi, tag):
    a(f"s_mov_b32 exec_lo, {mask_lo}"); a(f"s_mov_b32 exec_hi, {mask_hi}")
    a(f"s_mov_b32 s{S_SPIN}, {SPIN_MAX}")
    a.label(f"L_poll_{tag}")
    a(f"buffer_load_dwordx2 v[{T}:{T+1}], v{v_off}, {sr(S_WS,4)}, s{s_off} offen sc1")
    a("s_waitcnt vmcnt(0)")
    a(f"v_cmp_ne_u32 vcc, s{S_N0}, v{T}")
    a(f"v_cmp_ne_u32 s[{S_TMP}:{S_TMP+1}], s{S_N1}, v{T+1}")
    a(f"s_or_b64 vcc, vcc, s[{S_TMP}:{S_TMP+1}]")
    a(f"s_cbranch_vccz L_polld_{tag}")
    a(f"s_sub_u32 s{S_SPIN}, s{S_SPIN}, 1")
    a(f"s_cbranch_scc1 L_polld_{tag}")
    a("s_sleep 1")
    a(f"s_branch L_poll_{tag}")
    a.label(f"L_polld_{tag}")
    a("s_mov_b64 exec, -1")

V_DO = 2
V_AX, V_AW, V_AB = 8, 12, 13
D_Q, D_K, D_V, D_UR, D_UI = 20, 36, 52, 68, 84
V_F = 100
V_PK = 148
V_T = 172

def nld(c): return 7 if c < 8 else 6

def l_issue(a, c):
    slot, kc = c % 4, c & 7
    for i in range(4):
        a(f"s_add_u32 m0, s{S_MX}, {slot*16384 + i*1024}")
        a(f"s_add_u32 s{S_TMP}, s{S_SOX}, {i*4096 + kc*128}")
        a(f"buffer_load_dwordx4 v{V_DO + (i&1)}, {sr(S_X,4)}, s{S_TMP} offen lds")
    if c < 8:
        a(f"s_add_u32 s{S_TMP}, s{S_SOW}, {kc*64*3072}")
        for i in range(3):
            a(f"s_add_u32 m0, s{S_MW}, {slot*12288 + i*1024}")
            a("s_nop 0")
            a(f"buffer_load_dwordx4 v{V_DO + 2 + i}, {sr(S_W,4)}, s{S_TMP} offen lds")
    else:
        a(f"s_add_u32 s{S_TMP}, s{S_SOB}, {kc*128}")
        for i in range(2):
            a(f"s_add_u32 m0, s{S_MB}, {slot*12288 + i*4096}")
            a("s_nop 0")
            a(f"buffer_load_dwordx4 v{V_DO + 5}, {sr(S_BRE if i == 0 else S_BIM,4)}, s{S_TMP} offen lds")

def loader_setup(a):
    T = V_T
    a(f"v_lshrrev_b32 v{T}, 4, v0")
    a(f"v_and_b32 v{T+1}, 7, v0")
    a(f"v_xor_b32 v{T}, v{T}, v{T+1}")
    a(f"v_lshlrev_b32 v{T}, 4, v{T}")
    a(f"v_lshrrev_b32 v{T+1}, 5, v0")
    a(f"v_lshlrev_b32 v{T+1}, 4, v{T+1}")
    a(f"v_bfe_u32 v{T+2}, v0, 3, 2")
    a(f"v_add_u32 v{T+1}, v{T+1}, v{T+2}")
    a(f"v_lshl_add_u32 v{V_DO}, v{T+1}, 10, v{T}")
    a(f"v_xor_b32 v{V_DO+1}, 64, v{V_DO}")
    a(f"s_lshl_b32 s{S_SOX}, s{S_RB}, 2")
    a(f"s_add_u32 s{S_SOX}, s{S_SOX}, s{S_T}")
    a(f"s_lshl_b32 s{S_SOX}, s{S_SOX}, 15")
    a(f"s_lshl_b32 s{S_MX}, s{S_T}, 12")
    for e in range(3):
        a(f"v_add_u32 v{T+1}, {1024*e}, v1")
        a(f"v_mul_u32_u24 v{T+2}, 21846, v{T+1}")
        a(f"v_lshrrev_b32 v{T+2}, 22, v{T+2}")
        a(f"v_mul_u32_u24 v{T+3}, 192, v{T+2}")
        a(f"v_sub_u32 v{T+3}, v{T+1}, v{T+3}")
        a(f"v_lshrrev_b32 v{T+4}, 6, v{T+3}")
        a(f"v_and_b32 v{T+3}, 63, v{T+3}")
        a(f"v_mul_u32_u24 v{T+2}, 3072, v{T+2}")
        a(f"v_lshl_add_u32 v{T+2}, v{T+4}, 10, v{T+2}")
        a(f"v_add_u32 v{V_DO+2+e}, v{T+2}, v{T+3}")
    a(f"s_mul_i32 s{S_SOW}, s{S_T}, {16*3072}")
    a(f"s_lshl_b32 s{S_TMP}, s{S_HP}, 6")
    a(f"s_add_u32 s{S_SOW}, s{S_SOW}, s{S_TMP}")
    a(f"s_mul_i32 s{S_MW}, s{S_T}, 3072")
    a(f"s_add_u32 s{S_MW}, s{S_MW}, {LW}")
    a(f"v_lshrrev_b32 v{T+1}, 3, v0")
    a(f"v_lshl_add_u32 v{V_DO+5}, v{T+1}, 10, v{T}")
    a(f"s_and_b32 s{S_TMP}, s{S_T}, 1")
    a(f"s_lshl_b32 s{S_TMP}, s{S_TMP}, 6")
    a(f"v_xor_b32 v{V_DO+5}, s{S_TMP}, v{V_DO+5}")
    a(f"s_lshl_b32 s{S_SOB}, s{S_HP}, 2")
    a(f"s_add_u32 s{S_SOB}, s{S_SOB}, s{S_T}")
    a(f"s_lshl_b32 s{S_SOB}, s{S_SOB}, 13")
    a(f"s_lshl_b32 s{S_MB}, s{S_T}, 10")
    a(f"s_add_u32 s{S_MB}, s{S_MB}, {LW}")

def m_reads(a, g):
    c, s, buf = g >> 2, g & 3, g % 3
    slot = c % 4
    F = V_F + 16 * buf
    a(f"ds_read_b128 {vr(F,4)}, v{V_AX+s} offset:{slot*16384}")
    if c < 8:
        for seg in range(3):
            for e in range(2):
                a(f"ds_read_b64_tr_b16 {vr(F+4+4*seg+2*e,2)}, v{V_AW} offset:{slot*12288 + (16*s+4*e)*192 + seg*64}")
        return 7
    a(f"ds_read_b128 {vr(F+4,4)}, v{V_AB+s} offset:{slot*12288}")
    a(f"ds_read_b128 {vr(F+8,4)}, v{V_AB+s} offset:{slot*12288 + 4096}")
    return 3

def m_compute(a, g):
    F = V_F + 16 * (g % 3)
    if g < 32:
        mfma32(a, D_Q, F + 4, F, D_Q)
        mfma32(a, D_K, F + 8, F, D_K)
        mfma32(a, D_V, F, F + 12, D_V)
    else:
        mfma32(a, D_UR, F, F + 4, D_UR)
        mfma32(a, D_UI, F, F + 8, D_UI)

def m_epi1(a):
    T = V_T; PK = V_PK
    L = []
    L.append(f"s_mov_b32 s{S_P0}, {hex(QSCALE)}")
    for i in range(8):
        L.append(f"v_cvt_pk_bf16_f32 v{PK+8+i}, v{D_K+2*i}, v{D_K+2*i+1}")
    for i in range(8):
        L.append(f"v_cvt_pk_bf16_f32 v{PK+16+i}, v{D_V+2*i}, v{D_V+2*i+1}")
    L.append(f"s_lshl_b32 s{S_P0+1}, s{S_RB}, 2")
    L.append(f"s_add_u32 s{S_P0+1}, s{S_P0+1}, s{S_T}")
    L.append(f"s_lshl_b32 s{S_P0+2}, s{S_HP}, 7")
    L.append(f"s_add_u32 s{S_P0+1}, s{S_P0+1}, s{S_P0+2}")
    L.append(f"s_lshl_b32 s{S_P0+1}, s{S_P0+1}, 11")
    L.append(f"s_add_u32 s{S_P0+1}, s{S_P0+1}, {KV}")
    L.append(f"v_bfe_u32 v{T}, v0, 4, 1")
    L.append(f"v_lshlrev_b32 v{T}, 17, v{T}")
    L.append(f"v_lshrrev_b32 v{T+1}, 5, v0")
    L.append(f"v_lshl_add_u32 v{T}, v{T+1}, 8, v{T}")
    L.append(f"v_and_b32 v{T+1}, 15, v0")
    L.append(f"v_lshl_add_u32 v{T}, v{T+1}, 4, v{T}")
    L.append(f"buffer_store_dwordx4 {vr(PK+8,4)}, v1, {sr(S_WS,4)}, s{S_P0+1} offen sc1")
    L.append(f"buffer_store_dwordx4 {vr(PK+16,4)}, v{T}, {sr(S_WS,4)}, s{S_P0+1} offen offset:1024 sc1")
    L.append(f"buffer_store_dwordx4 {vr(PK+20,4)}, v{T}, {sr(S_WS,4)}, s{S_P0+1} offen offset:1536 sc1")
    L.append(f"s_add_u32 s{S_P0+2}, s{S_P0+1}, {64*2048}")
    L.append(f"buffer_store_dwordx4 {vr(PK+12,4)}, v1, {sr(S_WS,4)}, s{S_P0+2} offen sc1")
    for i in range(16):
        L.append(f"v_mul_f32 v{D_Q+i}, s{S_P0}, v{D_Q+i}")
    for i in range(8):
        L.append(f"v_cvt_pk_bf16_f32 v{PK+i}, v{D_Q+2*i}, v{D_Q+2*i+1}")
    L.append(f"s_lshl_b32 s{S_P0+2}, s{S_T}, 11")
    L.append(f"s_add_u32 s{S_P0+2}, s{S_P0+2}, {LQ}")
    L.append(f"v_add_u32 v{T+2}, s{S_P0+2}, v1")
    L.append(("ds", f"ds_write_b128 v{T+2}, {vr(PK,4)}"))
    L.append(("ds", f"ds_write_b128 v{T+2}, {vr(PK+4,4)} offset:1024"))
    return L

def m_frag_addr(a):
    T = V_T
    a(f"v_and_b32 v{T}, 31, v0")
    a(f"v_lshrrev_b32 v{T+1}, 5, v0")
    a(f"v_bfe_u32 v{T+2}, v0, 1, 3")
    a(f"v_lshlrev_b32 v{T+3}, 7, v{T}")
    a(f"s_lshl_b32 s{S_TMP}, s{S_T}, 12")
    for s in range(4):
        a(f"v_add_u32 v{T+4}, {2*s}, v{T+1}")
        a(f"v_xor_b32 v{T+4}, v{T+4}, v{T+2}")
        a(f"v_lshl_add_u32 v{T+4}, v{T+4}, 4, v{T+3}")
        a(f"v_add_u32 v{V_AX+s}, s{S_TMP}, v{T+4}")
        a(f"v_add_u32 v{V_AB+s}, {LW}, v{T+4}")
    a(f"v_bfe_u32 v{T}, v0, 2, 2")
    a(f"v_lshl_add_u32 v{T}, v{T+1}, 3, v{T}")
    a(f"v_mul_u32_u24 v{T}, 192, v{T}")
    a(f"v_bfe_u32 v{T+2}, v0, 4, 1")
    a(f"v_lshlrev_b32 v{T+2}, 5, v{T+2}")
    a(f"v_and_b32 v{T+3}, 3, v0")
    a(f"v_lshlrev_b32 v{T+3}, 3, v{T+3}")
    a(f"v_add3_u32 v{V_AW}, v{T}, v{T+2}, v{T+3}")
    a(f"v_add_u32 v{V_AW}, {LW}, v{V_AW}")

def m_phase1(a, prof):
    m_frag_addr(a)
    for i in range(80):
        a(f"v_mov_b32 v{D_Q+i}, 0")
    a("s_barrier")
    if prof: stamp(a, 1)
    nr = {0: m_reads(a, 0), 1: m_reads(a, 1)}
    epi = []
    for g in range(64):
        c, s = g >> 2, g & 3
        extra = 0
        if g + 2 < 64:
            nr[g + 2] = m_reads(a, g + 2)
            a(f"s_waitcnt lgkmcnt({nr[g+1] + nr[g+2]})")
        elif g + 1 < 64:
            a(f"s_waitcnt lgkmcnt({nr[g+1]})")
        else:
            a("s_waitcnt lgkmcnt(0)")
        m_compute(a, g)
        if g == 33:
            epi = m_epi1(a)
        if g >= 34 and epi:
            for _ in range(10):
                if not epi: break
                x = epi.pop(0)
                a(x[1] if isinstance(x, tuple) else x)
        if s == 1 and c <= 14:
            if c == 12:
                assert not epi
                a("s_waitcnt vmcnt(0)")
            a("s_barrier")
            if prof and c == 7: stamp(a, 2)
            if c == 12:
                a(f"s_cmp_lg_u32 s{S_WV}, 0")
                a("s_cbranch_scc1 L_f_nokvflag")
                a(f"s_lshl_b32 s{S_P0}, s{S_HP}, 4")
                a(f"s_add_u32 s{S_P0}, s{S_P0}, s{S_RB}")
                a(f"s_lshl_b32 s{S_P0}, s{S_P0}, 7")
                a(f"s_add_u32 s{S_P0}, s{S_P0}, {FL_KV}")
                flag_set(a, S_P0, V_T)
                a.label("L_f_nokvflag")
    a("s_nop 15")
    T = V_T
    a(f"v_and_b32 v{T}, 31, v0")
    a(f"v_lshrrev_b32 v{T+1}, 5, v0")
    a(f"s_lshl_b32 s{S_TMP}, s{S_T}, 1")
    a(f"v_add_u32 v{T+1}, s{S_TMP}, v{T+1}")
    a(f"v_lshl_add_u32 v{T+1}, v{T+1}, 6, v{T}")
    a(f"v_lshlrev_b32 v{T+1}, 6, v{T+1}")
    a(f"v_bfe_u32 v{T+2}, v0, 1, 2")
    for c in range(4):
        a(f"v_xor_b32 v{T+3}, {c}, v{T+2}")
        a(f"v_lshl_add_u32 v{T+3}, v{T+3}, 4, v{T+1}")
        a(f"ds_write_b128 v{T+3}, {vr(D_UR+4*c,4)} offset:{LU}")
        a(f"ds_write_b128 v{T+3}, {vr(D_UI+4*c,4)} offset:{LU + 32*64}")
    a("s_waitcnt lgkmcnt(0)")
    a("s_barrier")

def h_phase1(a, prof):
    H = k_c1
    loader_setup(a)
    load_ptr(a, S_LRE, "lre"); load_ptr(a, S_LIM, "lim"); load_ptr(a, S_LDT, "logdt")
    srds_main(a)
    for s in (S_LRE, S_LIM, S_LDT): make_srd(a, s, 1024)
    nonce_load(a, 30)
    t = H.H_R["t"]
    a(f"v_lshrrev_b32 v{H.H_CH}, 3, v0")
    a(f"s_lshl_b32 s{S_TMP}, s{S_HP}, 5")
    a(f"s_lshl_b32 s{S_TMP+1}, s{S_T}, 3")
    a(f"s_add_u32 s{S_TMP}, s{S_TMP}, s{S_TMP+1}")
    a(f"v_add_u32 v{H.H_CH}, s{S_TMP}, v{H.H_CH}")
    a(f"v_lshlrev_b32 v{t+6}, 1, v{H.H_CH}")
    a(f"v_and_b32 v{H.H_SEG}, 7, v0")
    a(f"buffer_load_ushort v{t}, v{t+6}, {sr(S_LRE,4)}, 0 offen")
    a(f"buffer_load_ushort v{t+1}, v{t+6}, {sr(S_LIM,4)}, 0 offen")
    a(f"buffer_load_ushort v{t+2}, v{t+6}, {sr(S_LDT,4)}, 0 offen")
    l_issue(a, 0); l_issue(a, 1)
    a(f"s_waitcnt vmcnt({nld(1)})")
    a("s_barrier")
    if prof: stamp(a, 1)
    l_issue(a, 2); l_issue(a, 3)
    nonce_take(a, 30)
    ssm_params_compute(a, H.H_R)
    for c in range(15):
        allowed = nld(2) + nld(3) if c == 0 else (nld(c + 2) if c + 2 <= 15 else 0)
        a(f"s_waitcnt vmcnt({allowed})")
        a("s_barrier")
        if prof and c == 7: stamp(a, 2)
        if c >= 1 and c + 3 <= 15:
            l_issue(a, c + 3)
    a("s_barrier")

def ssm_params_compute(a, R):
    b = Asm()
    ssm_params(b, 0, 0, 0, 0, R)
    lines = b.lines
    i = next(k for k, l in enumerate(lines) if "s_waitcnt vmcnt(0)" in l)
    for l in lines[i+1:]:
        a(l)

A = k_c2
def m_attention(a, prof, force_slow):
    A.S_WS = S_WS
    A.S_HP, A.S_RB, A.S_WV = S_HP, S_RB, S_WV
    A.S_HEAD, A.S_KH, A.S_HB, A.S_CUR, A.S_NXT, A.S_CH, A.S_IT = 32, 33, 34, 35, 38, 39, 27
    A.S_MASK = 40
    A.S_X0 = 46
    a(f"s_and_b32 s{A.S_KH}, s{S_WV}, 1")
    a(f"s_bfe_u32 s{S_TMP}, s{S_WV}, 0x10001")
    a(f"s_lshl_b32 s{A.S_HEAD}, s{S_HP}, 1")
    a(f"s_add_u32 s{A.S_HEAD}, s{A.S_HEAD}, s{S_TMP}")
    a(f"s_mov_b32 s{A.S_MASK}, 0x0000ffff"); a(f"s_mov_b32 s{A.S_MASK+1}, 0x0000ffff")
    a(f"s_lshl_b32 s{S_TMP}, s{S_TMP}, 10")
    a(f"s_add_u32 s{S_TMP}, s{S_TMP}, {LQ}")
    a(f"v_add_u32 v{A.A_T}, s{S_TMP}, v1")
    for qt in range(4):
        a(f"ds_read_b128 {vr(A.Q(qt),4)}, v{A.A_T} offset:{qt*2048}")
    a(f"v_and_b32 v{A.A_VO}, 15, v0")
    a(f"v_lshlrev_b32 v{A.A_VO}, 4, v{A.A_VO}")
    a(f"v_lshrrev_b32 v{A.A_T+1}, 5, v0")
    a(f"v_lshl_add_u32 v{A.A_VO}, v{A.A_T+1}, 8, v{A.A_VO}")
    A.init_v_consts(a)
    a(f"s_lshl_b32 s{A.S_HB}, s{A.S_HEAD}, 6")
    a(f"s_lshl_b32 s{S_TMP}, s{A.S_KH}, 1")
    a(f"s_add_u32 s{A.S_HB}, s{A.S_HB}, s{S_TMP}")
    a(f"s_lshl_b32 s{A.S_HB}, s{A.S_HB}, 11")
    a(f"s_add_u32 s{A.S_HB}, s{A.S_HB}, {KV}")
    a(f"s_mov_b32 s{A.S_CH}, s{S_RB}")
    a(f"s_lshl_b32 s{A.S_NXT}, s{A.S_CH}, 13")
    a(f"s_add_u32 s{A.S_NXT}, s{A.S_NXT}, s{A.S_HB}")
    a(f"v_lshlrev_b32 v{A.A_T+2}, 7, v0")
    a(f"s_lshl_b32 s{S_P0}, s{S_HP}, 11")
    a(f"s_add_u32 s{S_P0}, s{S_P0}, {FL_KV}")
    poll(a, S_P0, A.A_T + 2, A.A_T + 4, "0x0000ffff", "0", "kv")
    if prof: stamp(a, 4)
    A.attn_prologue_loads(a)
    a("s_waitcnt lgkmcnt(0)")
    A.attn_loop(a, "f")
    if prof: stamp(a, 5)
    A.attn_combine(a, LO)
    for t in range(2):
        if force_slow:
            a(f"v_mov_b32 v{A.O(t)+8}, 0")
        A.attn_check_fallback(a, t, f"f_{t}")
        A.attn_normalize(a, t, A.A_S1 + 4*t)
    a(f"s_lshl_b32 s{S_P0}, s{S_RB}, 1")
    a(f"s_add_u32 s{S_P0}, s{S_P0}, s{A.S_KH}")
    a(f"s_lshl_b32 s{S_P0}, s{S_P0}, 6")
    a(f"s_add_u32 s{S_P0}, s{S_P0}, s{A.S_HEAD}")
    a(f"s_lshl_b32 s{S_P0}, s{S_P0}, 10")
    a(f"s_add_u32 s{S_P0}, s{S_P0}, {OF}")
    a(f"buffer_store_dwordx4 {vr(A.A_S1,4)}, v1, {sr(S_WS,4)}, s{S_P0} offen sc1")
    a(f"s_add_u32 s{S_P0}, s{S_P0}, 32768")
    a(f"buffer_store_dwordx4 {vr(A.A_S1+4,4)}, v1, {sr(S_WS,4)}, s{S_P0} offen sc1")
    a("s_waitcnt vmcnt(0)")
    a("s_barrier")
    a(f"s_cmp_lg_u32 s{S_WV}, 0")
    a("s_cbranch_scc1 L_f_nooflag")
    a(f"s_lshl_b32 s{S_P0}, s{S_RB}, 4")
    a(f"s_add_u32 s{S_P0}, s{S_P0}, s{S_HP}")
    a(f"s_lshl_b32 s{S_P0}, s{S_P0}, 7")
    a(f"s_add_u32 s{S_P0}, s{S_P0}, {FL_O}")
    flag_set(a, S_P0, A.A_T)
    a.label("L_f_nooflag")

S_TT, S_CT, S_A, S_B = 42, 43, 44, 45
F_D, F_DA = 8, 24
F_WB = 40
F_OB = 104
F_T = 168

def out_geometry(a):
    a(f"s_and_b32 s{S_TMP}, s{S_T}, 1")
    a(f"s_and_b32 s{S_TMP+1}, s{S_HP}, 1")
    a(f"s_lshl_b32 s{S_TMP+1}, s{S_TMP+1}, 1")
    a(f"s_lshl_b32 s{S_TT}, s{S_RB}, 2")
    a(f"s_add_u32 s{S_TT}, s{S_TT}, s{S_TMP+1}")
    a(f"s_add_u32 s{S_TT}, s{S_TT}, s{S_TMP}")
    a(f"s_lshr_b32 s{S_TMP}, s{S_T}, 1")
    a(f"s_lshr_b32 s{S_CT}, s{S_HP}, 1")
    a(f"s_lshl_b32 s{S_CT}, s{S_CT}, 1")
    a(f"s_add_u32 s{S_CT}, s{S_CT}, s{S_TMP}")

def aproj(a, half, tag):
    a(f"s_lshl_b32 s{S_B}, s{S_CT}, 5")
    a(f"s_add_u32 s{S_B}, s{S_B}, {16*half}")
    a(f"s_lshl_b32 s{S_B}, s{S_B}, 10")
    a(f"s_add_u32 s{S_B}, s{S_B}, {WF}")
    for k in range(16):
        if k and k % 4 == 0: a(f"s_add_u32 s{S_B}, s{S_B}, 4096")
        a(f"buffer_load_dwordx4 {vr(F_WB+4*k,4)}, v1, {sr(S_WS,4)}, s{S_B} offen offset:{(k%4)*1024} sc1")
    for i in range(16):
        a(f"v_mov_b32 v{F_DA+i}, 0")
    a(f"v_lshlrev_b32 v{F_T}, 7, v0")
    a(f"s_lshl_b32 s{S_P0}, s{S_RB}, 4")
    a(f"s_add_u32 s{S_P0}, s{S_P0}, {8*half}")
    a(f"s_lshl_b32 s{S_P0}, s{S_P0}, 7")
    a(f"s_add_u32 s{S_P0}, s{S_P0}, {FL_O}")
    poll(a, S_P0, F_T, F_T + 2, "0xff", "0", f"o{tag}")
    a(f"s_lshl_b32 s{S_A}, s{S_TT}, 5")
    a(f"s_add_u32 s{S_A}, s{S_A}, {16*half}")
    a(f"s_lshl_b32 s{S_A}, s{S_A}, 10")
    a(f"s_add_u32 s{S_A}, s{S_A}, {OF}")
    for k in range(16):
        if k and k % 4 == 0: a(f"s_add_u32 s{S_A}, s{S_A}, 4096")
        a(f"buffer_load_dwordx4 {vr(F_OB+4*k,4)}, v1, {sr(S_WS,4)}, s{S_A} offen offset:{(k%4)*1024} sc1")
    for k in range(16):
        a(f"s_waitcnt vmcnt({15-k})")
        mfma32(a, F_DA, F_OB + 4*k, F_WB + 4*k, F_DA)
    a("s_nop 15")

def m_tail(a, prof):
    out_geometry(a)
    a(f"v_lshlrev_b32 v{F_T}, 7, v0")
    a(f"s_lshl_b32 s{S_P0}, s{S_CT}, 11")
    a(f"s_add_u32 s{S_P0}, s{S_P0}, {FL_P}")
    poll(a, S_P0, F_T, F_T + 2, "0x0000ffff", "0", "pm")
    aproj(a, 0, "m")
    if prof: stamp(a, 6)
    a(f"s_lshl_b32 s{S_TMP}, s{S_T}, 12")
    a(f"s_add_u32 s{S_TMP}, s{S_TMP}, {LA}")
    a(f"v_add_u32 v{F_T}, s{S_TMP}, v1")
    for c in range(4):
        a(f"ds_write_b128 v{F_T}, {vr(F_DA+4*c,4)} offset:{c*1024}")
    a("s_waitcnt lgkmcnt(0)")
    a("s_barrier")
    a(f"s_add_u32 s{S_TMP}, s2, s{S_WV}")
    a(f"s_cmp_lg_u32 s{S_TMP}, 0")
    a("s_cbranch_scc1 L_f_nononce")
    a("s_mov_b64 exec, 1")
    a(f"v_mov_b32 v{F_T}, s{S_N0}")
    a(f"v_mov_b32 v{F_T+1}, 0")
    a(f"s_mov_b32 s{S_TMP}, {NONCE}")
    a(f"buffer_store_dword v{F_T}, v{F_T+1}, {sr(S_WS,4)}, s{S_TMP} offen sc1")
    a.label("L_f_nononce")

def h_gate(a):
    T = V_T; D = 128
    a(f"s_lshl_b32 s{S_TMP}, s{S_RB}, 4")
    a(f"s_add_u32 s{S_TMP}, s{S_TMP}, s{S_HP}")
    a(f"s_lshl_b32 s{S_TMP}, s{S_TMP}, 2")
    a(f"s_add_u32 s{S_TMP}, s{S_TMP}, s{S_T}")
    a(f"s_lshl_b32 s{S_TMP+1}, s{S_TMP}, 1")
    a(f"s_lshl_b32 s{S_TMP}, s{S_TMP+1}, 10")
    a(f"buffer_load_dwordx4 {vr(D,4)}, v1, {sr(S_GT,4)}, 0 offen")
    a(f"buffer_load_dwordx4 {vr(D+4,4)}, v1, {sr(S_X,4)}, s{S_TMP} offen")
    a(f"buffer_load_dwordx4 {vr(D+8,4)}, v1, {sr(S_X,4)}, s{S_TMP} offen offset:1024")
    a(f"v_mov_b32 v{T}, 0"); a(f"v_mov_b32 v{T+1}, 0")
    a("s_waitcnt vmcnt(0)")
    for r in range(2):
        for i in range(4):
            a(f"v_dot2c_f32_bf16 v{T+r}, v{D+4+4*r+i}, v{D+i}")
    for sh in ("row_shr:1", "row_shr:2", "row_shr:4", "row_shr:8"):
        a("s_nop 1")
        for r in range(2):
            a(f"v_add_f32_dpp v{T+r}, v{T+r}, v{T+r} {sh} row_mask:0xf bank_mask:0xf bound_ctrl:1")
    a("s_nop 1")
    for r in range(2):
        a(f"v_add_f32_dpp v{T+r}, v{T+r}, v{T+r} row_bcast:15 row_mask:0xa bank_mask:0xf")
    a("s_nop 1")
    for r in range(2):
        a(f"v_add_f32_dpp v{T+r}, v{T+r}, v{T+r} row_bcast:31 row_mask:0xc bank_mask:0xf")
    for r in range(2):
        a(f"v_mul_f32 v{T+r}, 0xbfb8aa3b, v{T+r}")
    for r in range(2):
        a(f"v_exp_f32 v{T+r}, v{T+r}")
    a("s_nop 0")
    for r in range(2):
        a(f"v_add_f32 v{T+r}, 1.0, v{T+r}")
    for r in range(2):
        a(f"v_rcp_f32 v{T+r}, v{T+r}")
    a(f"s_lshl_b32 s{S_TMP}, s{S_TMP+1}, 2")
    a(f"s_add_u32 s{S_TMP}, s{S_TMP}, {GF}")
    a(f"v_mov_b32 v{T+2}, 0")
    a("s_mov_b32 exec_lo, 0"); a("s_mov_b32 exec_hi, 0x80000000")
    a(f"buffer_store_dwordx2 v[{T}:{T+1}], v{T+2}, {sr(S_WS,4)}, s{S_TMP} offen sc1")
    a("s_mov_b64 exec, -1")

def h_prep(a):
    B = 128; P = S_P0
    a(f"v_and_b32 v{B}, 31, v0")
    a(f"v_lshlrev_b32 v{B}, 10, v{B}")
    a(f"v_lshrrev_b32 v{B+1}, 5, v0")
    for i in range(4):
        a(f"s_lshl_b32 s{P}, s2, 2")
        a(f"s_add_u32 s{P}, s{P}, {i}")
        a(f"s_lshr_b32 s{P+1}, s{P}, 6")
        a(f"s_lshl_b32 s{P+1}, s{P+1}, 15")
        a(f"s_and_b32 s{P+2}, s{P}, 63")
        a(f"s_lshl_b32 s{P+2}, s{P+2}, 4")
        a(f"s_add_u32 s{P+1}, s{P+1}, s{P+2}")
        a("s_mov_b32 exec_lo, -1"); a("s_mov_b32 exec_hi, 0")
        a(f"buffer_load_dwordx4 {vr(B+4+4*i,4)}, v{B}, {sr(S_CRE,4)}, s{P+1} offen")
        a("s_mov_b32 exec_lo, 0"); a("s_mov_b32 exec_hi, -1")
        a(f"buffer_load_dwordx4 {vr(B+4+4*i,4)}, v{B}, {sr(S_CIM,4)}, s{P+1} offen")
    a("s_mov_b64 exec, -1")
    a(f"v_and_b32 v{B+2}, 31, v0")
    a(f"v_lshlrev_b32 v{B+2}, 1, v{B+2}")
    a(f"v_lshl_add_u32 v{B+2}, v{B+1}, 12, v{B+2}")
    for i in range(2):
        a(f"s_lshl_b32 s{P}, s2, 1")
        a(f"s_add_u32 s{P}, s{P}, {i}")
        a(f"s_lshr_b32 s{P+1}, s{P}, 5")
        a(f"s_lshl_b32 s{P+1}, s{P+1}, 6")
        a(f"s_and_b32 s{P+2}, s{P}, 31")
        a(f"s_lshl_b32 s{P+2}, s{P+2}, 14")
        a(f"s_add_u32 s{P+1}, s{P+1}, s{P+2}")
        for jj in range(8):
            row = 8*(jj >> 2) + (jj & 3)
            a(f"s_add_u32 s{P+3}, s{P+1}, {row*1024}")
            a(f"buffer_load_ushort v{B+28+8*i+jj}, v{B+2}, {sr(S_WO,4)}, s{P+3} offen")
    a("s_waitcnt vmcnt(0)")
    for i in range(2):
        for p in range(4):
            a(f"v_lshl_or_b32 v{B+20+4*i+p}, v{B+28+8*i+2*p+1}, 16, v{B+28+8*i+2*p}")
    for i in range(4):
        a(f"s_lshl_b32 s{P}, s2, 12")
        a(f"s_add_u32 s{P}, s{P}, {CF + i*1024}")
        a(f"buffer_store_dwordx4 {vr(B+4+4*i,4)}, v1, {sr(S_WS,4)}, s{P} offen sc1")
    for i in range(2):
        a(f"s_lshl_b32 s{P}, s2, 11")
        a(f"s_add_u32 s{P}, s{P}, {WF + i*1024}")
        a(f"buffer_store_dwordx4 {vr(B+20+4*i,4)}, v1, {sr(S_WS,4)}, s{P} offen sc1")
    a("s_waitcnt vmcnt(0)")
    a(f"s_lshl_b32 s{P}, s2, 7")
    a(f"s_add_u32 s{P}, s{P}, {FL_P}")
    flag_set(a, P, V_T)

def h_scan(a, prof):
    H = k_c1; R = H.H_R
    load_ptr(a, S_GT, "gate"); load_ptr(a, S_CRE, "cre"); load_ptr(a, S_CIM, "cim"); load_ptr(a, S_WO, "wo")
    load_ptr(a, S_OUT, "out"); load_ptr(a, S_DS, "dskip")
    H.helper_u_from_lds(a, S_T)
    a("s_waitcnt lgkmcnt(0)")
    make_srd(a, S_GT, 1024); make_srd(a, S_CRE, 512*1024); make_srd(a, S_CIM, 512*1024); make_srd(a, S_WO, 512*1024)
    make_srd(a, S_OUT, 4 << 20); make_srd(a, S_DS, 1024)
    a("s_setprio 2")
    local_scan(a, H.H_UR, H.H_UI, R["lr"], R["li"], H.H_HR, H.H_HI, tmp=R["t"])
    a(f"v_mov_b32 v94, v{H.H_HR}"); a(f"v_mov_b32 v95, v{H.H_HI}")
    H.ks8(a, H.H_HR, H.H_HI)
    a(f"v_lshlrev_b32 v{R['t']}, 3, v{H.H_CH}")
    a(f"s_lshl_b32 s{S_P0}, s{S_RB}, 12")
    a(f"s_add_u32 s{S_P0}, s{S_P0}, {EF}")
    a("s_mov_b32 exec_lo, 0x80808080"); a("s_mov_b32 exec_hi, 0x80808080")
    a(f"buffer_store_dwordx2 v[{H.H_HR}:{H.H_HI}], v{R['t']}, {sr(S_WS,4)}, s{S_P0} offen sc1")
    a("s_mov_b64 exec, -1")
    a("s_waitcnt vmcnt(0)")
    a(f"s_lshl_b32 s{S_P0}, s{S_HP}, 2")
    a(f"s_add_u32 s{S_P0}, s{S_P0}, s{S_T}")
    a(f"s_lshl_b32 s{S_P0+1}, s{S_P0}, 11")
    a(f"s_add_u32 s{S_P0+1}, s{S_P0+1}, {FL_E}")
    a(f"s_lshl_b32 s{S_P0}, s{S_RB}, 7")
    a(f"s_add_u32 s{S_P0}, s{S_P0}, s{S_P0+1}")
    flag_set(a, S_P0, V_T)
    a("s_setprio 0")
    if prof: stamp(a, 3)
    h_gate(a)
    a(f"s_cmp_lg_u32 s{S_T}, 3")
    a("s_cbranch_scc1 L_f_noprep")
    h_prep(a)
    a.label("L_f_noprep")
    a(f"s_cmp_eq_u32 s{S_RB}, 0")
    a("s_cbranch_scc1 L_f_noewait")
    a(f"s_lshl_b32 s{S_P0}, s{S_HP}, 2")
    a(f"s_add_u32 s{S_P0}, s{S_P0}, s{S_T}")
    a(f"s_lshl_b32 s{S_P0}, s{S_P0}, 11")
    a(f"s_add_u32 s{S_P0}, s{S_P0}, {FL_E}")
    a(f"s_bfm_b32 s{S_P0+1}, s{S_RB}, 0")
    a(f"v_lshlrev_b32 v{V_T+4}, 7, v0")
    poll(a, S_P0, V_T + 4, V_T + 6, f"s{S_P0+1}", "0", "e")
    a.label("L_f_noewait")
    if prof: stamp(a, 4)
    a("s_setprio 2")
    k_c3.ssm_carry(a, S_RB, S_WS, "f")
    a(f"v_mov_b32 v{H.H_HR}, v94"); a(f"v_mov_b32 v{H.H_HI}, v95")
    k_c3.ssm_finish(a, S_RB, S_HP, S_T, S_WS, LH, "f", store_flags=" sc1", have_ends=True)
    a("s_setprio 0")
    a("s_waitcnt vmcnt(0)")
    a(f"s_lshl_b32 s{S_P0}, s{S_RB}, 4")
    a(f"s_add_u32 s{S_P0}, s{S_P0}, s{S_HP}")
    a(f"s_lshl_b32 s{S_P0}, s{S_P0}, 2")
    a(f"s_add_u32 s{S_P0}, s{S_P0}, s{S_T}")
    a(f"s_lshl_b32 s{S_P0}, s{S_P0}, 7")
    a(f"s_add_u32 s{S_P0}, s{S_P0}, {FL_H}")
    flag_set(a, S_P0, V_T)
    if prof: stamp(a, 5)

Y_BUF = 40
Y_NB = 12
Y_X, Y_G = 136, 152
def h_y(a, prof):
    out_geometry(a)
    T = F_T
    a(f"v_lshlrev_b32 v{T}, 7, v0")
    a(f"s_lshl_b32 s{S_P0}, s{S_CT}, 11")
    a(f"s_add_u32 s{S_P0}, s{S_P0}, {FL_P}")
    poll(a, S_P0, T, T + 2, "0x0000ffff", "0", "ph")
    a(f"s_lshl_b32 s{S_P0}, s{S_RB}, 13")
    a(f"s_add_u32 s{S_P0}, s{S_P0}, {FL_H}")
    poll(a, S_P0, T, T + 2, "-1", "-1", "h")
    if prof: stamp(a, 6)
    for i in range(16):
        a(f"v_mov_b32 v{F_D+i}, 0")
    a(f"v_and_b32 v{T}, 31, v0")
    a(f"s_lshl_b32 s{S_TMP}, s{S_CT}, 5")
    a(f"v_add_u32 v{T}, s{S_TMP}, v{T}")
    a(f"v_lshlrev_b32 v{T+1}, 1, v{T}")
    a(f"buffer_load_ushort v{T+2}, v{T+1}, {sr(S_DS,4)}, 0 offen")
    a(f"v_lshrrev_b32 v{T+3}, 5, v0")
    a(f"v_lshl_add_u32 v{T+4}, v{T+3}, 14, v{T+1}")
    a(f"s_lshl_b32 s{S_TMP}, s{S_TT}, 15")
    for r in range(16):
        a(f"s_add_u32 s{S_TMP+1}, s{S_TMP}, {r*1024}")
        a(f"buffer_load_ushort v{Y_X+r}, v{T+4}, {sr(S_X,4)}, s{S_TMP+1} offen")
    a(f"v_lshlrev_b32 v{T+5}, 6, v{T+3}")
    a(f"s_lshl_b32 s{S_TMP}, s{S_TT}, 7")
    a(f"s_add_u32 s{S_TMP}, s{S_TMP}, {GF}")
    for c in range(4):
        a(f"buffer_load_dwordx4 {vr(Y_G+4*c,4)}, v{T+5}, {sr(S_WS,4)}, s{S_TMP} offen offset:{16*c} sc1")
    a(f"s_lshl_b32 s{S_A}, s{S_TT}, 16")
    a(f"s_add_u32 s{S_A}, s{S_A}, {HF}")
    a(f"s_lshl_b32 s{S_B}, s{S_CT}, 16")
    a(f"s_add_u32 s{S_B}, s{S_B}, {CF}")
    def issue(k):
        b = Y_BUF + 8 * (k % Y_NB)
        a(f"buffer_load_dwordx4 {vr(b,4)}, v1, {sr(S_WS,4)}, s{S_A} offen sc1")
        a(f"buffer_load_dwordx4 {vr(b+4,4)}, v1, {sr(S_WS,4)}, s{S_B} offen sc1")
        a(f"s_add_u32 s{S_A}, s{S_A}, 1024")
        a(f"s_add_u32 s{S_B}, s{S_B}, 1024")
    for k in range(Y_NB): issue(k)
    for k in range(64):
        left = min(Y_NB - 1, 63 - k)
        a(f"s_waitcnt vmcnt({2*left})")
        b = Y_BUF + 8 * (k % Y_NB)
        mfma32(a, F_D, b, b + 4, F_D)
        if k + Y_NB < 64: issue(k + Y_NB)
    a("s_nop 15")
    a(f"v_lshlrev_b32 v{T+2}, 16, v{T+2}")
    for r in range(16):
        a(f"v_lshlrev_b32 v{Y_X+r}, 16, v{Y_X+r}")
        a(f"v_fmac_f32 v{F_D+r}, v{Y_X+r}, v{T+2}")
    for r in range(16):
        a(f"v_mov_b32 v{184+r}, v{Y_G+r}")
    if prof: stamp(a, 7)

def h_tail(a, prof):
    T = F_T
    a("s_barrier")
    a("s_barrier")
    aproj(a, 1, "h")
    a("s_barrier")
    a(f"s_lshl_b32 s{S_TMP}, s{S_T}, 12")
    a(f"s_add_u32 s{S_TMP}, s{S_TMP}, {LA}")
    a(f"v_add_u32 v{T}, s{S_TMP}, v1")
    for c in range(4):
        a(f"ds_read_b128 {vr(F_WB+4*c,4)}, v{T} offset:{c*1024}")
    a(f"v_and_b32 v{T+1}, 31, v0")
    a(f"s_lshl_b32 s{S_TMP}, s{S_CT}, 5")
    a(f"v_add_u32 v{T+1}, s{S_TMP}, v{T+1}")
    a(f"v_lshrrev_b32 v{T+2}, 5, v0")
    a(f"v_lshlrev_b32 v{T+2}, 15, v{T+2}")
    a(f"v_lshl_add_u32 v{T+2}, v{T+1}, 2, v{T+2}")
    a(f"s_lshl_b32 s{S_TMP}, s{S_TT}, 16")
    a("s_waitcnt lgkmcnt(0)")
    for r in range(16):
        a(f"v_add_f32 v{F_DA+r}, v{F_DA+r}, v{F_WB+r}")
        a(f"v_sub_f32 v{F_DA+r}, v{F_DA+r}, v{F_D+r}")
        a(f"v_fmac_f32 v{F_D+r}, v{184+r}, v{F_DA+r}")
    for r in range(16):
        a(f"s_add_u32 s{S_TMP+1}, s{S_TMP}, {r*2048}")
        a(f"buffer_store_dword v{F_D+r}, v{T+2}, {sr(S_OUT,4)}, s{S_TMP+1} offen")

def gen_fused(prof=False, force_slow=False, name=NAME):
    a = Asm()
    a("s_cmp_ge_u32 s2, 256")
    a("s_cbranch_scc1 L_f_exit")
    if prof: stamp(a, 0)
    setup_common(a)
    a(f"s_cmp_ge_u32 s{S_WV}, 4")
    a("s_cbranch_scc1 L_f_helper")
    srds_main(a)
    nonce_load(a, 2)
    a("s_waitcnt vmcnt(0)")
    nonce_take(a, 2)
    m_phase1(a, prof)
    if prof: stamp(a, 3)
    m_attention(a, prof, force_slow)
    m_tail(a, prof)
    a("s_branch L_f_end")
    a.label("L_f_helper")
    h_phase1(a, prof)
    h_scan(a, prof)
    h_y(a, prof)
    h_tail(a, prof)
    a.label("L_f_end")
    if prof:
        a("s_waitcnt vmcnt(0)")
        a("s_memtime s[76:77]"); a("s_memrealtime s[78:79]"); a("s_waitcnt lgkmcnt(0)")
        a("s_mov_b32 s96, s76"); a("s_mov_b32 s97, s78")
        dump_stamps(a, 8, S_WV, S_WS, extra=(96, 97))
    a.label("L_f_exit")
    return kernel_block(name, a.text(), vgpr=200)
```

```python
QF = 0x000000
KV = 0x200000
OF = 0x600000
HF = 0x800000
UF = 0xC00000
EF = 0x1400000
GF = 0x1410000
CF = 0x1420000
WF = 0x1520000
FL = 0x15A0000
FL_KV = FL
FL_O  = FL_KV + 256 * 128
FL_P  = FL_O + 256 * 128
FL_G  = FL_P + 256 * 128
FL_E  = FL_G + 256 * 128
FL_H  = FL_E + 1024 * 128
NONCE = FL_H + 1024 * 128
WS_USED = 0x1610000
assert NONCE + 128 <= WS_USED
```

```python
from asmlib import *
def stamp(a, idx):
    a("s_memtime s[76:77]")
    a("s_memrealtime s[78:79]")
    a("s_waitcnt lgkmcnt(0)")
    a(f"s_mov_b32 s{80+2*idx}, s76")
    a(f"s_mov_b32 s{81+2*idx}, s78")

BASE = 0x1800000
def dump_stamps(a, n, wave_sreg, srd, base=None, extra=()):
    if base is None: base = BASE
    a("s_lshl_b32 s76, s2, 4")
    a(f"s_add_u32 s76, s76, s{wave_sreg}")
    a("s_lshl_b32 s76, s76, 7")
    a(f"s_add_u32 s76, s76, {base}")
    a(f"s_mov_b32 s{srd+2}, 0x2000000")
    a("s_mov_b64 exec, 1")
    a("v_mov_b32 v2, 0")
    for i in range(2*n):
        a(f"v_mov_b32 v3, s{80+i}")
        a(f"buffer_store_dword v3, v2, {sr(srd,4)}, s76 offen offset:{4*i}")
    for i, s in enumerate(extra):
        a(f"v_mov_b32 v3, s{s}")
        a(f"buffer_store_dword v3, v2, {sr(srd,4)}, s76 offen offset:{4*(2*n+i)}")

def report(r, nst, nw, names, base=0x1800000, t0=None):
    import numpy as np
    st = r.ws_get(base, np.uint32, (256, 16, 32))[:, :nw, :2*nst].astype(np.int64)
    cyc = st[:, :, 0::2]; rt = st[:, :, 1::2]
    if t0 is None: t0 = rt[:, :, 0].min()
    for i in range(nst):
        v = rt[:, :, i]; v = v[v > 0]
        s = "  %-14s t(us): min %.2f med %.2f max %.2f" % (names[i], (v.min() - t0) / 100., (np.median(v) - t0) / 100., (v.max() - t0) / 100.)
        if i > 0:
            ok = (rt[:, :, i] > 0) & (rt[:, :, i-1] > 0)
            dc = (cyc[:, :, i] - cyc[:, :, i-1])[ok]; dr = (rt[:, :, i] - rt[:, :, i-1])[ok]
            s += "   dcyc med %d max %d  clk %.2f" % (np.median(dc), dc.max(), dc.sum() / max(dr.sum(), 1) / 10)
        print(s)
    return t0
```

```python
import sys
from build import HDR
import k_f
def make(path, prof=False, force_slow=False):
    txt = HDR + f"; @launch grid=(256,1,1) block=(512,1,1) lds={k_f.F_LDS}\n" + '.amdgcn_target "amdgcn-amd-amdhsa--gfx950"\n' + k_f.gen_fused(prof=prof, force_slow=force_slow)
    open(path, "w").write(txt)
if __name__ == "__main__":
    make(sys.argv[1] if len(sys.argv) > 1 else "f.s", prof="prof" in sys.argv, force_slow="slow" in sys.argv)
```
